```python
import torch

def _softmax(x, axis=-1):
    return torch.softmax(x, dim=axis)
def _gelu(x):
    return torch.nn.functional.gelu(x, approximate="tanh")
def _silu(x):
    return torch.nn.functional.silu(x)
def _sigmoid(x):
    return torch.sigmoid(x)
def _layernorm(x, axis=-1, eps=1e-5):
    m = x.mean(dim=axis, keepdim=True)
    v = x.var(dim=axis, keepdim=True, unbiased=False)
    return (x - m) / torch.sqrt(v + eps)
def _scatter_add(tgt, idx, src, axis=0):
    return tgt.clone().index_add_(axis, idx, src)
def _segment_sum(src, seg, n):
    out = torch.zeros((n,) + src.shape[1:], dtype=src.dtype)
    return out.index_add_(0, seg, src)
def _pad(x, pw):
    flat = tuple(v for pair in reversed(pw) for v in pair)
    return torch.nn.functional.pad(x, flat)

kernel_name = 'standalone__adm_resblock__diffusion'

def setup_inputs():

    _w = (lambda a: (lambda t: t.to(torch.bfloat16) if t.is_floating_point() else t)(torch.as_tensor(a)))
    B, C, HW, E = 2, 320, 64, 1152
    sc = (9.0 * C) ** -0.5
    return {
        "x": _w((lambda *s: torch.randn(*s, dtype=torch.bfloat16) * 0.05)(B, C, HW, HW)),
        "t_emb": _w((lambda *s: torch.randn(*s, dtype=torch.bfloat16) * 0.2)(B, E)),
        "g1": _w(1.0 + 0.1 * (lambda *s: torch.randn(*s, dtype=torch.bfloat16) * 0.2)(C)),
        "be1": _w(0.1 * (lambda *s: torch.randn(*s, dtype=torch.bfloat16) * 0.2)(C)),
        "w1": _w((lambda *s: torch.randn(*s, dtype=torch.bfloat16) * 0.2)(C, C, 3, 3) * sc),
        "w_emb": _w((lambda *s: torch.randn(*s, dtype=torch.bfloat16) * 0.2)(E, C) * (E ** -0.5)),
        "g2": _w(1.0 + 0.1 * (lambda *s: torch.randn(*s, dtype=torch.bfloat16) * 0.2)(C)),
        "be2": _w(0.1 * (lambda *s: torch.randn(*s, dtype=torch.bfloat16) * 0.2)(C)),
        "w2": _w((lambda *s: torch.randn(*s, dtype=torch.bfloat16) * 0.2)(C, C, 3, 3) * sc),
    }

def reference(x, t_emb, g1, be1, w1, w_emb, g2, be2, w2):
    B, C, H, W = x.shape
    G, eps = 4, 1e-5
    def gn(z, gamma, beta):
        zr = z.reshape(B, G, (C // G) * H * W)
        mu = zr.mean(-1).reshape(B, G, 1)
        var = ((zr - mu) ** 2).mean(-1).reshape(B, G, 1)
        zn = ((zr - mu) / torch.sqrt(var + eps)).reshape(B, C, H, W)
        return zn * gamma.reshape(1, C, 1, 1) + beta.reshape(1, C, 1, 1)
    def conv3(z, w):
        zp = _pad(z, ((0, 0), (0, 0), (1, 1), (1, 1)))
        taps = [torch.einsum("bchw,oc->bohw", zp[:, :, i:i+H, j:j+W], w[:, :, i, j]) for i in range(3) for j in range(3)]
        out = taps[0]
        for t in taps[1:]:
            out = out + t
        return out
    h = conv3(_silu(gn(x, g1, be1)), w1)
    emb = _silu(t_emb) @ w_emb
    h = h + emb.reshape(B, C, 1, 1)
    h = conv3(_silu(gn(h, g2, be2)), w2)
    return x + h
```

```python
import re

TRANS = ("v_exp_f32", "v_log_f32", "v_rcp_f32", "v_rsq_f32", "v_sqrt_f32", "v_sin_f32", "v_cos_f32")

_reg_re = re.compile(r"^-?\|?(?:abs\()?([vsa])(?:(\d+)|\[(\d+):(\d+)\])\)?\|?$")


def regs_of(tok):
    tok = tok.strip()
    if tok in ("vcc",):
        return {("s", 106), ("s", 107)}
    if tok == "vcc_lo":
        return {("s", 106)}
    if tok == "vcc_hi":
        return {("s", 107)}
    if tok == "exec":
        return {("s", 126), ("s", 127)}
    if tok == "exec_lo":
        return {("s", 126)}
    if tok == "exec_hi":
        return {("s", 127)}
    if tok == "m0":
        return {("s", 124)}
    m = _reg_re.match(tok)
    if not m:
        return set()
    f = m.group(1)
    if m.group(2) is not None:
        return {(f, int(m.group(2)))}
    return {(f, i) for i in range(int(m.group(3)), int(m.group(4)) + 1)}


def split_ops(s):
    out, depth, cur = [], 0, ""
    for ch in s:
        if ch in "[(":
            depth += 1
        if ch in "])":
            depth -= 1
        if ch == "," and depth == 0:
            out.append(cur.strip())
            cur = ""
        else:
            cur += ch
    if cur.strip():
        out.append(cur.strip())
    return out


class Ins:
    def __init__(self, text):
        self.text = text
        t = text.split(";")[0].strip()
        self.is_label = t.endswith(":")
        self.is_dir = t.startswith(".") and not self.is_label
        self.op = ""
        self.rd = set()
        self.wr = set()
        self.kind = "other"
        self.srcC = set()
        self.srcAB = set()
        self.dpp = False
        self.store_wide = set()
        self.nstates = 1
        if not t or self.is_label or self.is_dir:
            self.nstates = 0
            return
        parts = t.split(None, 1)
        op = parts[0]
        self.op = op
        rest = parts[1] if len(parts) > 1 else ""
        ops = split_ops(rest)
        mods = []
        clean = []
        for o in ops:
            ws = o.split()
            clean.append(ws[0] if ws else "")
            mods += ws[1:]
        ops = clean
        if op == "s_nop":
            self.kind = "nop"
            self.nstates = int(ops[0], 0) + 1
            return
        if op.startswith("v_mfma"):
            self.kind = "mfma"
            self.wr = regs_of(ops[0])
            self.srcAB = regs_of(ops[1]) | regs_of(ops[2])
            self.srcC = regs_of(ops[3])
            self.rd = self.srcAB | self.srcC
            self.passes = 8 if "32x32" in op else 4
            return
        if op.startswith("v_"):
            self.kind = "valu"
            if "_dpp" in op or any(m.startswith(("row_", "quad_perm", "wave_")) for m in mods):
                self.dpp = True
            if op.startswith("v_permlane") and "swap" in op:
                self.kind = "permlane"
                self.wr = regs_of(ops[0]) | regs_of(ops[1])
                self.rd = set(self.wr)
                return
            if op.startswith("v_cmp"):
                self.wr = regs_of(ops[0])
                for o in ops[1:]:
                    self.rd |= regs_of(o)
                return
            if op.startswith(("v_readlane", "v_readfirstlane")):
                self.kind = "readlane"
                self.wr = regs_of(ops[0])
                for o in ops[1:]:
                    self.rd |= regs_of(o)
                return
            if op.startswith(("v_add_co", "v_sub_co", "v_addc_co", "v_subb_co", "v_subrev_co", "v_mad_u64")):
                self.wr = regs_of(ops[0]) | regs_of(ops[1])
                for o in ops[2:]:
                    self.rd |= regs_of(o)
                return
            self.wr = regs_of(ops[0])
            for o in ops[1:]:
                self.rd |= regs_of(o)
            if op.startswith(("v_fmac", "v_dot2c", "v_pk_fmac", "v_writelane")) or self.dpp:
                self.rd |= self.wr
            if op.startswith("v_dot"):
                self.kind = "dot"
            if op.split("_e")[0] in TRANS or op in TRANS:
                self.kind = "trans"
            return
        if op.startswith("ds_"):
            self.kind = "ds"
            if op.startswith(("ds_read", "ds_bpermute", "ds_permute", "ds_swizzle")):
                self.wr = regs_of(ops[0])
                for o in ops[1:]:
                    self.rd |= regs_of(o)
                if "d16" in op:
                    self.rd |= self.wr
            else:
                for o in ops:
                    self.rd |= regs_of(o)
            return
        if op.startswith(("buffer_", "global_", "flat_")):
            self.kind = "vmem"
            is_lds = "lds" in mods or op.startswith("global_load_lds")
            if "load" in op and not is_lds:
                self.wr = regs_of(ops[0])
                for o in ops[1:]:
                    self.rd |= regs_of(o)
                if "d16" in op:
                    self.rd |= self.wr
            else:
                for o in ops:
                    self.rd |= regs_of(o)
                if is_lds:
                    self.rd |= {("s", 124)}
                    self.kind = "vmem_lds"
                if "store" in op and ("x4" in op or "x3" in op):
                    data = ops[0] if op.startswith("buffer_") else ops[1]
                    self.store_wide = regs_of(data)
                if "atomic" in op and "sc0" in mods:
                    self.wr = regs_of(ops[0])
            return
        if op.startswith("s_"):
            self.kind = "salu"
            if op.startswith(("s_cmp", "s_waitcnt", "s_barrier", "s_branch", "s_cbranch", "s_endpgm", "s_sleep",
                              "s_setprio", "s_bitcmp")):
                for o in ops:
                    self.rd |= regs_of(o)
                if op.startswith(("s_branch", "s_cbranch")):
                    self.kind = "branch"
                return
            if ops:
                self.wr = regs_of(ops[0])
                for o in ops[1:]:
                    self.rd |= regs_of(o)
                if "saveexec" in op:
                    self.wr |= regs_of("exec")
            return


def is_valu(i):
    return i.kind in ("valu", "trans", "dot", "permlane", "readlane")


def vg(s):
    return {r for r in s if r[0] in "va"}


def sg(s):
    return {r for r in s if r[0] == "s"}


def required(p, c):
    n = 0
    if is_valu(p):
        w_v = vg(p.wr)
        w_s = sg(p.wr)
        if w_v:
            if c.kind == "mfma" and (w_v & c.rd):
                n = max(n, 2)
            if c.dpp and (w_v & c.rd):
                n = max(n, 2)
            if c.kind == "permlane" and (w_v & c.rd):
                n = max(n, 2)
            if c.kind == "readlane" and (w_v & c.rd):
                n = max(n, 1)
            if p.kind == "trans" and (w_v & (c.rd | c.wr)):
                n = max(n, 1)
            if p.kind == "dot" and (w_v & (c.rd | c.wr)):
                if c.kind == "dot" and c.op == p.op:
                    ops = split_ops(c.text.split(";")[0].strip().split(None, 1)[1])
                    ab = regs_of(ops[1].split()[0]) | regs_of(ops[2].split()[0])
                    if w_v & ab:
                        n = max(n, 3)
                else:
                    n = max(n, 3)
        if w_s:
            if c.kind in ("vmem", "vmem_lds") and (w_s & c.rd):
                n = max(n, 5)
            if is_valu(c) and (w_s & c.rd):
                n = max(n, 4 if c.kind == "readlane" else 2)
            if c.kind in ("salu", "branch") and (w_s & c.rd):
                n = max(n, 1)
            if c.kind == "branch" and ("vcc" in c.op) and (w_s & regs_of("vcc")):
                n = max(n, 5)
            if c.kind == "mfma" and (w_s & regs_of("exec")):
                n = max(n, 4)
    if p.kind == "mfma":
        big = {4: 8, 8: 12}[p.passes]
        ovl = {4: 6, 8: 10}[p.passes]
        war = {4: 3, 8: 7}[p.passes]
        if c.kind == "mfma":
            if p.wr & c.srcAB:
                n = max(n, big)
            if p.wr & c.srcC:
                if not (p.wr == c.srcC and p.passes == c.passes):
                    n = max(n, ovl)
            elif p.wr & c.wr:
                n = max(n, ovl)
        elif is_valu(c) or c.kind in ("ds", "vmem", "vmem_lds"):
            if p.wr & (c.rd | c.wr):
                n = max(n, big)
            if is_valu(c) and (p.srcC & c.wr):
                n = max(n, war)
    if p.kind == "salu" and (("s", 124) in p.wr) and c.kind == "vmem_lds":
        n = max(n, 1)
    if p.store_wide and (p.store_wide & c.wr):
        n = max(n, 2)
    return n


class Asm:
    def __init__(self):
        self.ins = []

    def __call__(self, text):
        for ln in text.split("\n"):
            ln = ln.strip()
            if ln:
                self.ins.append(Ins(ln))

    def label(self, name):
        self.ins.append(Ins(name + ":"))

    def comment(self, t):
        self.ins.append(Ins("; " + t))

    def finalize(self):
        out = []
        WINDOW = 24
        for c in self.ins:
            if c.nstates == 0:
                out.append(c)
                continue
            need = 0
            dist = 0
            for p in reversed(out):
                if p.nstates == 0:
                    continue
                r = required(p, c)
                if r > dist:
                    need = max(need, r - dist)
                dist += p.nstates
                if dist > WINDOW:
                    break
            while need > 0:
                k = min(need, 16)
                out.append(Ins("s_nop %d" % (k - 1)))
                need -= k
            out.append(c)
        lines = []
        for i in out:
            if i.is_label or i.is_dir:
                lines.append(i.text)
            else:
                lines.append("    " + i.text)
        return "\n".join(lines) + "\n"


class Counter:
    def __init__(self, asm, name, maxn):
        self.asm = asm
        self.name = name
        self.maxn = maxn
        self.q = []
        self.done = set()

    def issue(self, tag):
        self.q.append(tag)

    def need(self, tags):
        if not isinstance(tags, (list, set)):
            tags = [tags]
        idx = -1
        for t in tags:
            if t in self.done:
                continue
            pos = [i for i, x in enumerate(self.q) if x == t]
            assert pos, ("tag never issued", t)
            idx = max(idx, pos[-1])
        if idx < 0:
            return
        n = len(self.q) - 1 - idx
        if n > self.maxn:
            n = self.maxn
            idx = len(self.q) - 1 - n
        self.asm("s_waitcnt %s(%d)" % (self.name, n))
        for t in self.q[: idx + 1]:
            self.done.add(t)
        self.q = self.q[idx + 1:]
        for t in self.q:
            self.done.discard(t)

    def drain(self):
        if self.q:
            self.asm("s_waitcnt %s(0)" % self.name)
        for t in self.q:
            self.done.add(t)
        self.q = []

    def reset_after_wait0(self):
        for t in self.q:
            self.done.add(t)
        self.q = []


class RegAlloc:
    def __init__(self, prefix, start, limit):
        self.prefix = prefix
        self.next = start
        self.limit = limit
        self.hi = start

    def alloc(self, n=1, align=1):
        b = (self.next + align - 1) // align * align
        assert b + n <= self.limit, ("out of regs", self.prefix, b + n)
        self.next = b + n
        self.hi = max(self.hi, self.next)
        return b


def R(prefix, base, n=1):
    if n == 1:
        return "%s%d" % (prefix, base)
    return "%s[%d:%d]" % (prefix, base, base + n - 1)


def v(base, n=1):
    return R("v", base, n)


def s(base, n=1):
    return R("s", base, n)


def a(base, n=1):
    return R("a", base, n)
```

```python
import sys
import struct
from asmlib import Asm, Counter, RegAlloc, v, s, a

SLICE = 655360
P1 = 262144
P2 = 524288
A1_OFF = 0
A2_OFF = 8 * SLICE
NSTEP = 23
WSTREAM = NSTEP * 5120
WPSZ = 16 * WSTREAM
WP1_OFF = 16 * SLICE
WP2_OFF = WP1_OFF + WPSZ
ST1_OFF = WP2_OFF + WPSZ
ST2_OFF = ST1_OFF + 8192
EMB_OFF = ST2_OFF + 8192
DBG_OFF = EMB_OFF + 40960
HUGE = 0x40000000

TAPS = [(0, 1), (0, 0), (0, 2), (1, 1), (1, 0), (1, 2), (2, 1), (2, 0), (2, 2)]
PAIRS = [((0, 0), (0, 1), 0), ((1, 0), (1, 1), 0), ((2, 0), (2, 1), 0), ((0, 2), (1, 2), 1), ((2, 2), None, 2)]

LOG2E = 1.4426950408889634


def f32(x):
    return "0x%08x" % struct.unpack("<I", struct.pack("<f", x))[0]


S_X, S_TE, S_G1, S_B1, S_W1, S_WE, S_G2, S_B2, S_W2, S_OUT, S_DBG, S_WS = range(4, 28, 2)


def load_kernargs(A):
    A("s_load_dwordx16 s[4:19], s[0:1], 0")
    A("s_load_dwordx8 s[20:27], s[0:1], 64")


def srd(A, d, base, off, nrec):
    if off == 0:
        A("s_mov_b32 %s, %s" % (s(d), s(base)))
        A("s_mov_b32 %s, %s" % (s(d + 1), s(base + 1)))
    else:
        A("s_add_u32 %s, %s, %s" % (s(d), s(base), off))
        A("s_addc_u32 %s, %s, 0" % (s(d + 1), s(base + 1)))
    A("s_mov_b32 %s, %s" % (s(d + 2), nrec))
    A("s_mov_b32 %s, 0x00020000" % s(d + 3))


def row_sum(A, r):
    for mod in ("quad_perm:[1,0,3,2]", "quad_perm:[2,3,0,1]", "row_half_mirror", "row_mirror"):
        A("v_add_f32_dpp %s, %s, %s %s row_mask:0xf bank_mask:0xf" % (v(r), v(r), v(r), mod))


def wave_sum(A, r, t):
    row_sum(A, r)
    A("v_mov_b32 %s, %s" % (v(t), v(r)))
    A("v_permlane16_swap_b32 %s, %s" % (v(r), v(t)))
    A("v_add_f32 %s, %s, %s" % (v(r), v(r), v(t)))
    A("v_mov_b32 %s, %s" % (v(t), v(r)))
    A("v_permlane32_swap_b32 %s, %s" % (v(r), v(t)))
    A("v_add_f32 %s, %s, %s" % (v(r), v(r), v(t)))


def header(name):
    return ".globl %s\n.p2align 8\n.type %s,@function\n%s:\n" % (name, name, name)


def descriptor(name, nvgpr, accum, nsgpr=96):
    return """.section .rodata,"a"
.p2align 6
.amdhsa_kernel %s
  .amdhsa_next_free_vgpr %d
  .amdhsa_next_free_sgpr %d
  .amdhsa_accum_offset %d
  .amdhsa_group_segment_fixed_size 0
  .amdhsa_kernarg_size 96
  .amdhsa_user_sgpr_count 2
  .amdhsa_user_sgpr_kernarg_segment_ptr 1
  .amdhsa_system_sgpr_workgroup_id_x 1
.end_amdhsa_kernel
.text
""" % (name, nvgpr, nsgpr, accum)


def combine_stats(A, g0, tmp, n_per, total_n, ngran_per_lane=2, tagged=False):
    m0, q0, m1, q1 = g0, g0 + 1, g0 + 2, g0 + 3
    t0, t1, t2 = tmp, tmp + 1, tmp + 2
    if tagged:
        A("v_and_b32 %s, 0x7fffffff, %s" % (v(q0), v(q0)))
        A("v_and_b32 %s, 0x7fffffff, %s" % (v(q1), v(q1)))
    A("v_add_f32 %s, %s, %s" % (v(t0), v(m0), v(m1)))
    wave_sum(A, t0, t1)
    A("v_mul_f32 %s, %s, %s" % (v(t0), f32(1.0 / 128), v(t0)))
    A("v_sub_f32 %s, %s, %s" % (v(m0), v(m0), v(t0)))
    A("v_sub_f32 %s, %s, %s" % (v(m1), v(m1), v(t0)))
    A("v_mul_f32 %s, %s, %s" % (v(m0), v(m0), v(m0)))
    A("v_fmac_f32 %s, %s, %s" % (v(m0), v(m1), v(m1)))
    A("v_add_f32 %s, %s, %s" % (v(q0), v(q0), v(q1)))
    A("v_mov_b32 %s, %s" % (v(t2), f32(float(n_per))))
    A("v_fmac_f32 %s, %s, %s" % (v(q0), v(m0), v(t2)))
    wave_sum(A, q0, t1)
    A("v_mov_b32 %s, %s" % (v(t2), f32(1e-5)))
    A("v_fmac_f32 %s, %s, %s" % (v(t2), f32(1.0 / total_n), v(q0)))
    A("v_rsq_f32 %s, %s" % (v(q0), v(t2)))
    A("v_mov_b32 %s, %s" % (v(m0), v(t0)))


def silu_pair(A, y, t):
    A("v_exp_f32 %s, %s" % (v(t), v(t)))
    A("v_exp_f32 %s, %s" % (v(t + 1), v(t + 1)))
    A("v_pk_add_f32 %s, %s, 1.0 op_sel_hi:[1,0]" % (v(t, 2), v(t, 2)))
    A("v_rcp_f32 %s, %s" % (v(t), v(t)))
    A("v_rcp_f32 %s, %s" % (v(t + 1), v(t + 1)))
    A("v_pk_mul_f32 %s, %s, %s" % (v(y, 2), v(y, 2), v(t, 2)))


def gen_prep():
    A = Asm()
    NST, NRP, NEM = 256, 120, 20
    A("s_cmp_ge_u32 s2, %d" % (NST + NRP + NEM))
    A("s_cbranch_scc1 L_prep_end")
    load_kernargs(A)
    A("v_lshrrev_b32 v2, 6, v0")
    A("v_and_b32 v3, 63, v0")
    A("v_readfirstlane_b32 s3, v2")
    A("s_cmp_ge_u32 s2, %d" % NST)
    A("s_cbranch_scc1 L_prep_notstats")
    A("v_lshlrev_b32 v1, 4, v0")
    A("s_mul_i32 s28, s2, 20480")
    for j in range(1, 5):
        A("s_add_u32 %s, s28, %d" % (s(28 + j), 4096 * j))
    A("s_mov_b32 s33, 0x3f803f80")
    A("s_waitcnt lgkmcnt(0)")
    srd(A, 36, S_X, 0, 5242880)
    for j in range(5):
        A("buffer_load_dwordx4 %s, v1, s[36:39], %s offen" % (v(4 + 4 * j, 4), s(28 + j)))
    srd(A, 40, S_WS, ST1_OFF, 16384)
    for k in range(4):
        A("v_mov_b32 %s, 0" % v(24 + k))
    for j in range(5):
        A("s_waitcnt vmcnt(%d)" % (4 - j))
        for k in range(4):
            A("v_dot2_f32_bf16 %s, %s, s33, %s" % (v(24 + k), v(4 + 4 * j + k), v(24 + k)))
    A("v_add_f32 v24, v24, v25")
    A("v_add_f32 v26, v26, v27")
    A("v_add_f32 v24, v24, v26")
    wave_sum(A, 24, 25)
    A("v_mul_f32 v26, %s, v24" % f32(-1.0 / 2560))
    A("v_mov_b32 v27, v26")
    for k in range(4):
        A("v_mov_b32 %s, 0" % v(28 + k))
    for d in range(20):
        lo = 32 + 2 * (d % 4)
        acc = 28 + 2 * (d % 2)
        A("v_lshlrev_b32 %s, 16, %s" % (v(lo), v(4 + d)))
        A("v_and_b32 %s, 0xffff0000, %s" % (v(lo + 1), v(4 + d)))
        A("v_pk_add_f32 %s, %s, v[26:27]" % (v(lo, 2), v(lo, 2)))
        A("v_pk_fma_f32 %s, %s, %s, %s" % (v(acc, 2), v(lo, 2), v(lo, 2), v(acc, 2)))
    A("v_pk_add_f32 v[28:29], v[28:29], v[30:31]")
    A("v_add_f32 v29, v28, v29")
    wave_sum(A, 29, 25)
    A("v_sub_f32 v28, 0, v26")
    A("v_lshlrev_b32 v2, 3, v2")
    A("v_mov_b32 v30, 0")
    A("v_mov_b32 v31, 0")
    A("s_lshl_b32 s28, s2, 5")
    A("s_add_u32 s29, s28, 8192")
    A("s_mov_b64 exec, 1")
    A("buffer_store_dwordx2 v[28:29], v2, s[40:43], s28 offen")
    A("buffer_store_dwordx2 v[30:31], v2, s[40:43], s29 offen")
    A("s_endpgm")
    A.label("L_prep_notstats")
    A("s_cmp_ge_u32 s2, %d" % (NST + NRP))
    A("s_cbranch_scc1 L_prep_emb")
    A("s_sub_u32 s28, s2, %d" % NST)
    A("s_mov_b32 s29, 0")
    A("s_cmp_ge_u32 s28, 40")
    A("s_addc_u32 s29, s29, 0")
    A("s_cmp_ge_u32 s28, 80")
    A("s_addc_u32 s29, s29, 0")
    A("s_mul_i32 s30, s29, 40")
    A("s_sub_u32 s28, s28, s30")
    A("s_lshr_b32 s30, s28, 3")
    A("s_bfe_u32 s31, s28, 0x10002")
    A("s_and_b32 s32, s28, 3")
    A("s_lshl_b32 s33, s30, 4")
    A("s_mov_b32 s34, 4")
    A("s_lshr_b32 s35, s30, 1")
    A("s_lshl_b32 s35, s35, 5")
    A("s_and_b32 s36, s30, 1")
    A("s_lshl_b32 s36, s36, 2")
    A("s_add_u32 s35, s35, s36")
    A("s_cmp_lt_u32 s30, 4")
    A("s_cselect_b32 s36, 1, 0")
    A("s_andn2_b32 s36, s36, s31")
    A("s_cmp_lg_u32 s36, 0")
    A("s_cselect_b32 s33, s35, s33")
    A("s_cselect_b32 s34, 8, s34")
    A("s_mul_i32 s35, s32, 80")
    A("s_add_u32 s33, s33, s35")
    A("v_bfe_u32 v4, v3, 2, 2")
    A("v_and_b32 v5, 3, v3")
    A("v_mul_lo_u32 v4, v4, s34")
    A("v_add3_u32 v4, v4, v5, s33")
    A("s_movk_i32 s35, 5760")
    A("v_mul_lo_u32 v4, v4, s35")
    A("v_lshrrev_b32 v5, 4, v3")
    A("v_and_b32 v6, 1, v5")
    A("s_cmp_eq_u32 s29, 2")
    A("s_cselect_b64 s[36:37], -1, 0")
    A("v_cndmask_b32 v5, v5, v6, s[36:37]")
    A("s_movk_i32 s35, 144")
    A("v_mul_lo_u32 v5, v5, s35")
    A("v_add_u32 v4, v4, v5")
    A("s_mul_i32 s35, s3, 1440")
    A("s_mul_i32 s36, s29, 576")
    A("s_add_u32 s35, s35, s36")
    A("s_waitcnt lgkmcnt(0)")
    A("s_cmp_eq_u32 s31, 0")
    A("s_cselect_b32 s40, %s, %s" % (s(S_W1), s(S_W2)))
    A("s_cselect_b32 s41, %s, %s" % (s(S_W1 + 1), s(S_W2 + 1)))
    A("s_mov_b32 s42, 1843200")
    A("s_mov_b32 s43, 0x00020000")
    for j in range(9):
        A("buffer_load_dwordx4 %s, v4, s[40:43], s35 offen offset:%d" % (v(8 + 4 * j, 4), 16 * j))
    A("s_lshl_b32 s36, s32, 2")
    A("s_add_u32 s36, s36, s3")
    A("s_mul_i32 s36, s36, %d" % WSTREAM)
    A("s_mul_i32 s37, s31, %d" % WPSZ)
    A("s_add_u32 s36, s36, s37")
    A("s_add_u32 s36, s36, %d" % WP1_OFF)
    srd(A, 44, S_WS, "s36", WSTREAM)
    A("s_mul_i32 s36, s29, %d" % (9 * 5120))
    A("s_lshl_b32 s37, s30, 10")
    A("s_add_u32 s36, s36, s37")
    A("v_lshlrev_b32 v5, 4, v3")
    A("s_mov_b32 s38, 0x07060100")
    A("s_mov_b32 s39, 0x05040302")
    A("s_waitcnt vmcnt(0)")
    src = lambda i: 8 + (i >> 1)
    T = 48
    for tap in range(9):
        for d in range(4):
            i0 = 18 * d + tap
            i1 = i0 + 9
            sel = "s38" if tap % 2 == 0 else "s39"
            A("v_perm_b32 %s, %s, %s, %s" % (v(T + 4 * tap + d), v(src(i1)), v(src(i0)), sel))
    A("s_cmp_eq_u32 s29, 2")
    A("s_cbranch_scc1 L_prep_rpB")
    for idx, (i, j) in enumerate(TAPS):
        tap = 3 * i + j
        A("s_add_u32 s37, s36, %d" % (idx * 5120))
        A("buffer_store_dwordx4 %s, v5, s[44:47], s37 offen" % v(T + 4 * tap, 4))
    A("s_endpgm")
    A.label("L_prep_rpB")
    A("s_mov_b32 s38, 0")
    A("s_mov_b32 s39, -1")
    for k, (t1, t2, _) in enumerate(PAIRS):
        ta = 3 * t1[0] + t1[1]
        for d in range(4):
            if t2 is None:
                A("v_cndmask_b32 %s, %s, 0, s[38:39]" % (v(8 + 4 * k + d), v(T + 4 * ta + d)))
            else:
                tb = 3 * t2[0] + t2[1]
                A("v_cndmask_b32 %s, %s, %s, s[38:39]" % (v(8 + 4 * k + d), v(T + 4 * ta + d), v(T + 4 * tb + d)))
        A("s_add_u32 s37, s36, %d" % (k * 5120))
        A("buffer_store_dwordx4 %s, v5, s[44:47], s37 offen" % v(8 + 4 * k, 4))
    A("s_endpgm")
    A.label("L_prep_emb")
    A("s_sub_u32 s28, s2, %d" % (NST + NRP))
    A("s_lshr_b32 s29, s28, 2")
    A("s_and_b32 s30, s28, 3")
    A("v_and_b32 v4, 7, v0")
    A("v_lshrrev_b32 v5, 3, v0")
    A("s_mul_i32 s31, s30, 288")
    A("v_add_u32 v5, s31, v5")
    A("v_lshlrev_b32 v6, 1, v5")
    A("s_movk_i32 s31, 640")
    A("v_mul_lo_u32 v7, v5, s31")
    A("v_lshl_add_u32 v7, v4, 4, v7")
    A("s_lshl_b32 s31, s29, 7")
    A("s_waitcnt lgkmcnt(0)")
    srd(A, 36, S_TE, 0, 4608)
    srd(A, 40, S_WE, 0, 737280)
    TE = 8
    WE = 28
    for j in range(9):
        A("buffer_load_ushort %s, v6, s[36:39], 0 offen offset:%d" % (v(TE + 2 * j), 64 * j))
        A("buffer_load_ushort %s, v6, s[36:39], 0 offen offset:%d" % (v(TE + 2 * j + 1), 64 * j + 2304))
    for j in range(9):
        A("s_add_u32 s32, s31, %d" % (j * 32 * 640))
        A("buffer_load_dwordx4 %s, v7, s[40:43], s32 offen" % v(WE + 4 * j, 4))
    srd(A, 44, S_WS, EMB_OFF, 40960)
    A("s_waitcnt vmcnt(9)")
    TT = 64
    for j in range(9):
        y = TE + 2 * j
        A("v_lshlrev_b32 %s, 16, %s" % (v(y), v(y)))
        A("v_lshlrev_b32 %s, 16, %s" % (v(y + 1), v(y + 1)))
        A("v_mul_f32 %s, %s, %s" % (v(TT), f32(-LOG2E), v(y)))
        A("v_mul_f32 %s, %s, %s" % (v(TT + 1), f32(-LOG2E), v(y + 1)))
        silu_pair(A, y, TT)
    ACC = 68
    for k in range(16):
        A("v_mov_b32 %s, 0" % v(ACC + k))
    for j in range(9):
        A("s_waitcnt vmcnt(%d)" % (8 - j))
        for d in range(4):
            A("v_lshlrev_b32 %s, 16, %s" % (v(TT), v(WE + 4 * j + d)))
            A("v_and_b32 %s, 0xffff0000, %s" % (v(TT + 1), v(WE + 4 * j + d)))
            for b in range(2):
                A("v_fmac_f32 %s, %s, %s" % (v(ACC + 8 * b + 2 * d), v(TE + 2 * j + b), v(TT)))
                A("v_fmac_f32 %s, %s, %s" % (v(ACC + 8 * b + 2 * d + 1), v(TE + 2 * j + b), v(TT + 1)))
    for c in range(8):
        A("v_permlane32_swap_b32 %s, %s" % (v(ACC + c), v(ACC + 8 + c)))
    for c in range(8):
        A("v_add_f32 %s, %s, %s" % (v(ACC + c), v(ACC + c), v(ACC + 8 + c)))
    for c in range(4):
        A("v_permlane16_swap_b32 %s, %s" % (v(ACC + c), v(ACC + 4 + c)))
    for c in range(4):
        A("v_add_f32 %s, %s, %s" % (v(ACC + c), v(ACC + c), v(ACC + 4 + c)))
    for c in range(4):
        A("v_add_f32_dpp %s, %s, %s row_ror:8 row_mask:0xf bank_mask:0xf" % (v(ACC + c), v(ACC + c), v(ACC + c)))
    A("v_lshrrev_b32 v5, 5, v3")
    A("s_movk_i32 s32, 1280")
    A("v_mul_lo_u32 v5, v5, s32")
    A("v_bfe_u32 v6, v3, 4, 1")
    A("v_lshl_add_u32 v5, v6, 4, v5")
    A("v_lshl_add_u32 v5, v4, 5, v5")
    A("s_lshl_b32 s32, s30, 2")
    A("s_add_u32 s32, s32, s3")
    A("s_mul_i32 s32, s32, 2560")
    A("s_lshl_b32 s33, s29, 8")
    A("s_add_u32 s32, s32, s33")
    A("s_mov_b32 exec_lo, 0x00ff00ff")
    A("s_mov_b32 exec_hi, 0x00ff00ff")
    A("buffer_store_dwordx4 %s, v5, s[44:47], s32 offen" % v(ACC, 4))
    A.label("L_prep_end")
    A("s_endpgm")
    return header("prep_kernel") + A.finalize() + descriptor("prep_kernel", 88, 88)


def gen_norm1():
    A = Asm()
    A("s_cmp_ge_u32 s2, 256")
    A("s_cbranch_scc1 L_n1_end")
    load_kernargs(A)
    A("v_lshrrev_b32 v2, 6, v0")
    A("v_and_b32 v3, 63, v0")
    A("v_readfirstlane_b32 s3, v2")
    A("s_lshr_b32 s28, s2, 5")
    A("s_and_b32 s29, s2, 31")
    A("s_and_b32 s30, s28, 3")
    A("s_cmp_eq_u32 s3, 4")
    A("s_cbranch_scc1 L_n1_w4")
    A("s_lshr_b32 s32, s3, 1")
    A("s_and_b32 s33, s3, 1")
    A("v_and_b32 v4, 3, v3")
    A("v_lshrrev_b32 v5, 2, v3")
    A("v_and_b32 v6, 1, v5")
    A("v_lshlrev_b32 v6, 1, v6")
    A("v_xor_b32 v6, v6, v4")
    A("v_lshlrev_b32 v6, 4, v6")
    A("v_lshlrev_b32 v5, 2, v5")
    A("s_lshl_b32 s33, s33, 6")
    A("v_add_u32 v5, s33, v5")
    A("s_lshl_b32 s34, s29, 7")
    A("v_add_u32 v7, s34, v5")
    A("v_lshl_add_u32 v6, v7, 6, v6")
    A("s_mul_i32 s34, s32, %d" % P1)
    A("v_add_u32 v6, s34, v6")
    A("s_lshl_b32 s34, s32, 2")
    A("v_add_u32 v4, s34, v4")
    A("s_movk_i32 s31, 64")
    A("s_branch L_n1_go")
    A.label("L_n1_w4")
    A("v_and_b32 v4, 1, v3")
    A("v_lshrrev_b32 v5, 1, v3")
    A("v_lshlrev_b32 v5, 2, v5")
    A("s_lshl_b32 s34, s29, 7")
    A("v_add_u32 v7, s34, v5")
    A("v_lshlrev_b32 v6, 4, v4")
    A("v_lshl_add_u32 v6, v7, 5, v6")
    A("v_add_u32 v6, %d, v6" % P2)
    A("v_add_u32 v4, 8, v4")
    A("s_movk_i32 s31, 32")
    A.label("L_n1_go")
    A("v_lshlrev_b32 v8, 16, v4")
    A("v_lshl_add_u32 v8, v7, 1, v8")
    A("s_mul_i32 s34, s28, %d" % SLICE)
    A("v_lshlrev_b32 v9, 4, v3")
    A("s_lshl_b32 s35, s28, 10")
    A("v_lshlrev_b32 v10, 4, v4")
    A("s_mul_i32 s36, s30, 160")
    A("s_waitcnt lgkmcnt(0)")
    srd(A, 40, S_WS, ST1_OFF, 8192)
    srd(A, 44, S_X, "s34", SLICE)
    srd(A, 48, S_G1, 0, 640)
    srd(A, 52, S_B1, 0, 640)
    srd(A, 56, S_WS, "s34", SLICE)
    A("buffer_load_dwordx4 v[12:15], v9, s[40:43], s35 offen")
    A("buffer_load_dwordx4 v[16:19], v10, s[48:51], s36 offen")
    A("buffer_load_dwordx4 v[20:23], v10, s[52:55], s36 offen")
    X = 24
    for k in range(8):
        A("s_mov_b32 s37, %d" % (k * 8192))
        A("buffer_load_dwordx2 %s, v8, s[44:47], s37 offen" % v(X + 2 * k, 2))
    A("v_add_u32 v7, s31, v6")
    A("v_add_u32 v8, s31, v7")
    A("v_add_u32 v9, s31, v8")
    A("s_waitcnt vmcnt(10)")
    combine_stats(A, 12, 40, 2560, 327680)
    CA, CB, CA2, CB2 = 44, 52, 60, 68
    A("s_waitcnt vmcnt(8)")
    for d in range(4):
        A("v_lshlrev_b32 %s, 16, %s" % (v(CA + 2 * d), v(16 + d)))
        A("v_and_b32 %s, 0xffff0000, %s" % (v(CA + 2 * d + 1), v(16 + d)))
        A("v_lshlrev_b32 %s, 16, %s" % (v(CB + 2 * d), v(20 + d)))
        A("v_and_b32 %s, 0xffff0000, %s" % (v(CB + 2 * d + 1), v(20 + d)))
    for c in range(8):
        A("v_mul_f32 %s, %s, v13" % (v(CA + c), v(CA + c)))
        A("v_fma_f32 %s, -v12, %s, %s" % (v(CB + c), v(CA + c), v(CB + c)))
        A("v_mul_f32 %s, %s, %s" % (v(CA2 + c), f32(-LOG2E), v(CA + c)))
        A("v_mul_f32 %s, %s, %s" % (v(CB2 + c), f32(-LOG2E), v(CB + c)))
    O = 76
    Y, TT = 92, 96
    A("s_waitcnt vmcnt(0)")
    cnt = 0
    for d in range(4):
        k = 2 * d
        for j in range(4):
            y = Y + 8 * (cnt % 2)
            t = y + 2
            x0 = y + 4
            cnt += 1
            src0 = X + 2 * k + (j >> 1)
            src1 = X + 2 * (k + 1) + (j >> 1)
            if j % 2 == 0:
                A("v_lshlrev_b32 %s, 16, %s" % (v(x0), v(src0)))
                A("v_lshlrev_b32 %s, 16, %s" % (v(x0 + 1), v(src1)))
            else:
                A("v_and_b32 %s, 0xffff0000, %s" % (v(x0), v(src0)))
                A("v_and_b32 %s, 0xffff0000, %s" % (v(x0 + 1), v(src1)))
            A("v_pk_fma_f32 %s, %s, %s, %s" % (v(t, 2), v(x0, 2), v(CA2 + k, 2), v(CB2 + k, 2)))
            A("v_pk_fma_f32 %s, %s, %s, %s" % (v(y, 2), v(x0, 2), v(CA + k, 2), v(CB + k, 2)))
            silu_pair(A, y, t)
            A("v_cvt_pk_bf16_f32 %s, %s, %s" % (v(O + 4 * j + d), v(y), v(y + 1)))
    for j in range(4):
        A("buffer_store_dwordx4 %s, %s, s[56:59], 0 offen" % (v(O + 4 * j, 4), v(6 + j)))
    A.label("L_n1_end")
    A("s_endpgm")
    return header("norm1_kernel") + A.finalize() + descriptor("norm1_kernel", 112, 112)


RS_A = 2176
RS_C = 1088
PART_A = 13056
PART_C = 26112
WAVE_LDS = 32640
CONV_LDS = 4 * WAVE_LDS


def gen_conv(which, opt):
    name = "conv%d_kernel" % which
    L = "L_c%d_" % which
    D = opt.get("D", 4)
    A = Asm()
    vm = Counter(A, "vmcnt", 63)
    lg = Counter(A, "lgkmcnt", 15)
    VA = RegAlloc("v", 1, 256)
    SA = RegAlloc("s", 28, 100)
    vLane = VA.alloc()
    vL16 = VA.alloc()
    vL16b = VA.alloc()
    vT = [VA.alloc() for _ in range(8)]
    vAb = [[VA.alloc() for j in range(3)] for r in range(4)]
    vBb = [[VA.alloc() for j in range(3)] for r in range(4)]
    vO = VA.alloc(40, 4)
    vPool = VA.alloc(120 if D * 20 + 32 < 120 else D * 20 + 32, 4)
    vW = [vPool + 20 * i for i in range(D)]
    vFr = vPool + 20 * D
    vH = VA.alloc(12, 4)
    vX = VA.alloc(40, 4)
    sW = SA.alloc()
    sB, sG, sTY, sTX = [SA.alloc() for _ in range(4)]
    sT = [SA.alloc() for _ in range(6)]
    sOff = [SA.alloc() for _ in range(6)]
    sMa = [SA.alloc() for _ in range(6)]
    sMc = [SA.alloc() for _ in range(6)]
    sWoff = SA.alloc()
    sWB = SA.alloc()
    sACT = SA.alloc(4, 4)
    sWP = SA.alloc(4, 4)
    sE1 = SA.alloc(4, 4)
    sE2 = SA.alloc(4, 4)
    sE3 = SA.alloc(4, 4)
    sE4 = SA.alloc(4, 4)
    sE5 = SA.alloc(4, 4)
    sMask = SA.alloc(2, 2)

    def acc(r, h, t):
        i = (h * 5 + t) * 4
        if r == 3:
            return v(vO + i, 4)
        return a(r * 40 + i, 4)

    A("s_cmp_ge_u32 s2, 256")
    A("s_cbranch_scc1 %send" % L)
    load_kernargs(A)
    A("v_lshrrev_b32 %s, 6, v0" % v(vT[0]))
    A("v_and_b32 %s, 63, v0" % v(vLane))
    A("v_readfirstlane_b32 %s, %s" % (s(sW), v(vT[0])))
    mp = opt.get("map", 2)
    A("s_and_b32 %s, s2, 7" % s(sT[0]))
    A("s_lshr_b32 %s, s2, 3" % s(sT[1]))
    if mp == 2:
        A("s_lshr_b32 %s, %s, 2" % (s(sB), s(sT[0])))
        A("s_and_b32 %s, %s, 1" % (s(sG), s(sT[0])))
        A("s_lshl_b32 %s, %s, 1" % (s(sG), s(sG)))
        A("s_and_b32 %s, %s, 1" % (s(sT[2]), s(sT[1])))
        A("s_add_u32 %s, %s, %s" % (s(sG), s(sG), s(sT[2])))
        A("s_bfe_u32 %s, %s, 0x10001" % (s(sTX), s(sT[1])))
        A("s_bfe_u32 %s, %s, 0x10001" % (s(sTY), s(sT[0])))
        A("s_lshl_b32 %s, %s, 3" % (s(sTY), s(sTY)))
        A("s_lshr_b32 %s, %s, 2" % (s(sT[2]), s(sT[1])))
        A("s_add_u32 %s, %s, %s" % (s(sTY), s(sTY), s(sT[2])))
    elif mp == 1:
        A("s_lshr_b32 %s, %s, 2" % (s(sB), s(sT[0])))
        A("s_and_b32 %s, %s, 3" % (s(sG), s(sT[0])))
        A("s_and_b32 %s, %s, 1" % (s(sTX), s(sT[1])))
        A("s_lshr_b32 %s, %s, 1" % (s(sTY), s(sT[1])))
    elif mp == 4:
        A("s_lshr_b32 %s, %s, 2" % (s(sB), s(sT[0])))
        A("s_and_b32 %s, %s, 3" % (s(sG), s(sT[1])))
        A("s_bfe_u32 %s, %s, 0x10002" % (s(sTX), s(sT[1])))
        A("s_and_b32 %s, %s, 3" % (s(sTY), s(sT[0])))
        A("s_lshl_b32 %s, %s, 2" % (s(sTY), s(sTY)))
        A("s_lshr_b32 %s, %s, 3" % (s(sT[2]), s(sT[1])))
        A("s_add_u32 %s, %s, %s" % (s(sTY), s(sTY), s(sT[2])))
    A("s_lshl_b32 %s, %s, 2" % (s(sTY), s(sTY)))
    A("s_lshl_b32 %s, %s, 5" % (s(sTX), s(sTX)))
    A("s_mul_i32 %s, %s, %d" % (s(sWB), s(sW), WAVE_LDS))
    A("v_lshlrev_b32 %s, 4, %s" % (v(vL16), v(vLane)))
    A("v_add_u32 %s, 4096, %s" % (v(vL16b), v(vL16)))
    for k in range(6):
        r = sT[0]
        if k < 4:
            A("s_add_u32 %s, %s, %d" % (s(r), s(sW), 1 + k))
            A("s_and_b32 %s, %s, 3" % (s(r), s(r)))
        else:
            A("s_mov_b32 %s, %d" % (s(r), k))
        A("s_mul_i32 %s, %s, %d" % (s(sMa[k]), s(r), RS_A))
        A("s_add_u32 %s, %s, %s" % (s(sMa[k]), s(sMa[k]), s(sWB)))
        A("s_add_u32 %s, %s, 64" % (s(sMa[k]), s(sMa[k])))
        A("s_mul_i32 %s, %s, %d" % (s(sMc[k]), s(r), RS_C))
        A("s_add_u32 %s, %s, %s" % (s(sMc[k]), s(sMc[k]), s(sWB)))
        A("s_add_u32 %s, %s, %d" % (s(sMc[k]), s(sMc[k]), PART_C + 32))
        A("s_add_u32 %s, %s, %s" % (s(r), s(r), s(sTY)))
        A("s_sub_u32 %s, %s, 1" % (s(r), s(r)))
        A("s_lshl_b32 %s, %s, 6" % (s(sOff[k]), s(r)))
        A("s_add_u32 %s, %s, %s" % (s(sOff[k]), s(sOff[k]), s(sTX)))
        A("s_lshl_b32 %s, %s, 6" % (s(sOff[k]), s(sOff[k])))
        A("s_cmp_lt_u32 %s, 64" % s(r))
        A("s_cselect_b32 %s, %s, 0x%x" % (s(sOff[k]), s(sOff[k]), HUGE))
    t0, t1, t2, t3, t4, t5, t6, t7 = vT
    A("v_lshrrev_b32 %s, 3, %s" % (v(t4), v(vLane)))
    A("v_bfe_u32 %s, %s, 2, 1" % (v(t5), v(vLane)))
    A("v_and_b32 %s, 3, %s" % (v(t6), v(vLane)))
    A("v_mul_u32_u24 %s, 33, %s" % (v(t7), v(t5)))
    A("v_mul_u32_u24 %s, %d, %s" % (v(t2), RS_A, v(t4)))
    A("v_lshl_add_u32 %s, %s, 6, %s" % (v(t2), v(t7), v(t2)))
    A("v_lshl_add_u32 %s, %s, 4, %s" % (v(t2), v(t6), v(t2)))
    A("v_add_u32 %s, %s, %s" % (v(t2), s(sWB), v(t2)))
    A("v_mul_u32_u24 %s, %d, %s" % (v(t3), RS_C, v(t4)))
    A("v_lshl_add_u32 %s, %s, 5, %s" % (v(t3), v(t7), v(t3)))
    A("v_lshl_add_u32 %s, %s, 4, %s" % (v(t3), v(t6), v(t3)))
    A("v_add_u32 %s, %s, %s" % (v(t3), s(sWB), v(t3)))
    A("v_add_u32 %s, %d, %s" % (v(t3), PART_C, v(t3)))
    A("v_add_u32 %s, %s, %s" % (v(t4), s(sTY), v(t4)))
    A("v_subrev_u32 %s, 1, %s" % (v(t4), v(t4)))
    A("v_add_u32 %s, %s, %s" % (v(t7), s(sTX), v(t7)))
    A("v_subrev_u32 %s, 1, %s" % (v(t7), v(t7)))
    A("v_max_u32 %s, %s, %s" % (v(t5), v(t4), v(t7)))
    A("v_lshl_add_u32 %s, %s, 6, %s" % (v(t4), v(t4), v(t7)))
    A("v_lshlrev_b32 %s, 4, %s" % (v(t6), v(t6)))
    A("v_lshl_add_u32 %s, %s, 6, %s" % (v(t0), v(t4), v(t6)))
    A("v_lshl_add_u32 %s, %s, 5, %s" % (v(t1), v(t4), v(t6)))
    A("v_cmp_gt_u32 vcc, 64, %s" % v(t5))
    A("v_mov_b32 %s, 0x%x" % (v(t4), HUGE))
    A("v_cndmask_b32 %s, %s, %s, vcc" % (v(t0), v(t4), v(t0)))
    A("v_cndmask_b32 %s, %s, %s, vcc" % (v(t1), v(t4), v(t1)))
    A("s_lshl_b32 %s, %s, 2" % (s(sT[0]), s(sB)))
    A("s_add_u32 %s, %s, %s" % (s(sT[0]), s(sT[0]), s(sW)))
    A("s_mul_i32 %s, %s, %d" % (s(sT[0]), s(sT[0]), SLICE))
    A("s_add_u32 %s, %s, %d" % (s(sT[0]), s(sT[0]), A1_OFF if which == 1 else A2_OFF))
    A("s_lshl_b32 %s, %s, 2" % (s(sT[1]), s(sG)))
    A("s_add_u32 %s, %s, %s" % (s(sT[1]), s(sT[1]), s(sW)))
    A("s_mul_i32 %s, %s, %d" % (s(sT[1]), s(sT[1]), WSTREAM))
    A("s_add_u32 %s, %s, %d" % (s(sT[1]), s(sT[1]), WP1_OFF if which == 1 else WP2_OFF))
    A("s_waitcnt lgkmcnt(0)")
    srd(A, sACT, S_WS, s(sT[0]), SLICE)
    srd(A, sWP, S_WS, s(sT[1]), WSTREAM)

    def w_loads(n):
        out = []
        for t in range(5):
            def f(t=t, n=n):
                if t == 0:
                    A("s_mov_b32 %s, %d" % (s(sWoff), n * 5120))
                if t < 4:
                    A("buffer_load_dwordx4 %s, %s, %s, %s offen offset:%d" % (
                        v(vW[n % D] + 4 * t, 4), v(vL16), s(sWP, 4), s(sWoff), t * 1024))
                else:
                    A("buffer_load_dwordx4 %s, %s, %s, %s offen" % (
                        v(vW[n % D] + 4 * t, 4), v(vL16b), s(sWP, 4), s(sWoff)))
                vm.issue(("W", n))
            out.append(f)
        return out

    def dma(p, k):
        out = []
        if p < 2:
            def f0():
                A("s_add_u32 m0, %s, %d" % (s(sMa[k]), p * PART_A))
                A("s_add_u32 %s, %s, %d" % (s(sT[2]), s(sOff[k]), p * P1))
                A("buffer_load_dwordx4 %s, %s, %s offen lds" % (v(vL16), s(sACT, 4), s(sT[2])))
                vm.issue(("D", p, k))

            def f1():
                A("buffer_load_dwordx4 %s, %s, %s offen offset:1024 lds" % (v(vL16), s(sACT, 4), s(sT[2])))
                vm.issue(("D", p, k))
            out = [f0, f1]
        else:
            def f0():
                A("s_mov_b32 m0, %s" % s(sMc[k]))
                A("s_lshr_b32 %s, %s, 1" % (s(sT[2]), s(sOff[k])))
                A("s_add_u32 %s, %s, %d" % (s(sT[2]), s(sT[2]), P2))
                A("buffer_load_dwordx4 %s, %s, %s offen lds" % (v(vL16), s(sACT, 4), s(sT[2])))
                vm.issue(("D", p, k))
            out = [f0]
        return out

    def run(fs):
        for f in fs:
            f()

    run(w_loads(0))
    for k in range(4):
        run(dma(0, k))
    A("s_mov_b32 %s, %d" % (s(sT[3]), P1))
    A("s_mov_b32 %s, %d" % (s(sT[4]), P2))
    A("buffer_load_dwordx4 %s, %s, %s, 0 offen" % (v(vH, 4), v(t0), s(sACT, 4)))
    vm.issue("H")
    A("buffer_load_dwordx4 %s, %s, %s, %s offen" % (v(vH + 4, 4), v(t0), s(sACT, 4), s(sT[3])))
    vm.issue("H")
    A("buffer_load_dwordx4 %s, %s, %s, %s offen" % (v(vH + 8, 4), v(t1), s(sACT, 4), s(sT[4])))
    vm.issue("H")
    run(w_loads(1))
    run(dma(0, 4))
    for n in range(2, D - 1):
        run(w_loads(n))
    run(dma(0, 5))
    rho, sgv, x1, x2 = t4, t5, t6, t7
    A("v_and_b32 %s, 15, %s" % (v(rho), v(vLane)))
    A("v_lshrrev_b32 %s, 4, %s" % (v(sgv), v(vLane)))
    sc = vX
    for j in range(3):
        A("v_add_u32 %s, %d, %s" % (v(x1), j - 1, v(rho)))
        A("v_bfe_u32 %s, %s, 2, 1" % (v(x2), v(x1)))
        A("v_lshlrev_b32 %s, 1, %s" % (v(x2), v(x2)))
        A("v_xor_b32 %s, %s, %s" % (v(x2), v(x2), v(sgv)))
        A("v_lshlrev_b32 %s, 4, %s" % (v(x2), v(x2)))
        A("v_lshl_add_u32 %s, %s, 6, %s" % (v(sc + j), v(x1), v(x2)))
        for r in range(4):
            A("v_add_u32 %s, %s, %s" % (v(vAb[r][j]), s(sMa[r]), v(sc + j)))
    A("v_and_b32 %s, 1, %s" % (v(x1), v(sgv)))
    A("v_lshlrev_b32 %s, 4, %s" % (v(x1), v(x1)))
    A("v_lshl_add_u32 %s, %s, 5, %s" % (v(x1), v(rho), v(x1)))
    A("v_subrev_u32 %s, 32, %s" % (v(x1), v(x1)))
    A("v_lshrrev_b32 %s, 1, %s" % (v(x2), v(sgv)))
    for dk, delta in enumerate((32, RS_C, 0)):
        A("v_mul_u32_u24 %s, %d, %s" % (v(sc + 3), delta, v(x2)))
        A("v_add_u32 %s, %s, %s" % (v(sc + 3), v(sc + 3), v(x1)))
        for r in range(4):
            A("v_add_u32 %s, %s, %s" % (v(vBb[r][dk]), s(sMc[r]), v(sc + 3)))

    steps = []
    for c in range(2):
        for (i, j) in TAPS:
            steps.append(("A", c, i, j))
    for k, (ta, tb, dk) in enumerate(PAIRS):
        steps.append(("B", ta, tb, dk))
    assert len(steps) == NSTEP

    halo_written = [False]

    def write_halo():
        if halo_written[0]:
            return
        vm.need("H")
        A("s_mov_b32 exec_hi, 0x0000ffff")
        A("ds_write_b128 %s, %s" % (v(t2), v(vH, 4)))
        lg.issue("hw")
        A("ds_write_b128 %s, %s offset:%d" % (v(t2), v(vH + 4, 4), PART_A))
        lg.issue("hw")
        A("s_mov_b32 exec_lo, 0x33333333")
        A("s_mov_b32 exec_hi, 0x00003333")
        A("ds_write_b128 %s, %s" % (v(t3), v(vH + 8, 4)))
        lg.issue("hw")
        A("s_mov_b64 exec, -1")
        halo_written[0] = True

    def frag_read(n, m):
        st = steps[n]
        r, h = m >> 1, m & 1
        if st[0] == "A":
            _, c, i, j = st
            rows = [r] if i == 0 else list(range(5 if i == 1 else 6))
            vm.need([("D", c, k) for k in rows])
            if j != 1:
                write_halo()
            off = c * PART_A + i * RS_A + h * 1024
            A("ds_read_b128 %s, %s offset:%d" % (v(vFr + 4 * m, 4), v(vAb[r][j]), off))
        else:
            _, ta, tb, dk = st
            vm.need([("D", 2, k) for k in range(6)])
            write_halo()
            off = ta[0] * RS_C + ta[1] * 32 + h * 512
            A("ds_read_b128 %s, %s offset:%d" % (v(vFr + 4 * m, 4), v(vBb[r][dk]), off))
        lg.issue(("F", n, m))

    def side_loads():
        out = []
        if which == 1:
            def prep():
                A("v_and_b32 %s, 15, %s" % (v(t0), v(vLane)))
                A("v_lshrrev_b32 %s, 4, %s" % (v(t1), v(vLane)))
                A("v_mul_u32_u24 %s, 2560, %s" % (v(t0), v(t0)))
                A("v_lshl_add_u32 %s, %s, 4, %s" % (v(t4), v(t1), v(t0)))
                A("v_lshl_add_u32 %s, %s, 5, %s" % (v(t0), v(t1), v(t0)))
                A("v_lshlrev_b32 %s, 3, %s" % (v(t5), v(t1)))
                A("v_lshlrev_b32 %s, 4, %s" % (v(t1), v(t1)))
                A("s_mul_i32 %s, %s, 1280" % (s(sT[3]), s(sB)))
                A("s_mul_i32 %s, %s, 320" % (s(sT[4]), s(sG)))
                A("s_add_u32 %s, %s, %s" % (s(sT[3]), s(sT[3]), s(sT[4])))
                A("s_mul_i32 %s, %s, 160" % (s(sT[4]), s(sG)))
                srd(A, sE1, S_WS, EMB_OFF, 40960)
                srd(A, sE2, S_G2, 0, 640)
                srd(A, sE3, S_B2, 0, 640)
            out.append(prep)
            offs = [(t0, 0), (t0, 16), (t0, 128), (t0, 144), (t4, 256)]
            for t in range(5):
                def f(t=t):
                    A("buffer_load_dwordx4 %s, %s, %s, %s offen offset:%d" % (
                        v(vX + 4 * t, 4), v(offs[t][0]), s(sE1, 4), s(sT[3]), offs[t][1]))
                    vm.issue("E")
                out.append(f)
            for e, sr in enumerate((sE2, sE3)):
                def f(e=e, sr=sr):
                    base = vX + 20 + 10 * e
                    A("buffer_load_dwordx4 %s, %s, %s, %s offen" % (v(base, 4), v(t1), s(sr, 4), s(sT[4])))
                    vm.issue("E")
                    A("buffer_load_dwordx4 %s, %s, %s, %s offen offset:64" % (v(base + 4, 4), v(t1), s(sr, 4), s(sT[4])))
                    vm.issue("E")
                    A("buffer_load_dwordx2 %s, %s, %s, %s offen offset:128" % (v(base + 8, 2), v(t5), s(sr, 4), s(sT[4])))
                    vm.issue("E")
                out.append(f)
        else:
            def prep():
                A("v_and_b32 %s, 15, %s" % (v(t0), v(vLane)))
                A("v_lshlrev_b32 %s, 13, %s" % (v(t0), v(t0)))
                A("v_bfe_u32 %s, %s, 4, 1" % (v(t1), v(vLane)))
                A("v_lshl_add_u32 %s, %s, 5, %s" % (v(t0), v(t1), v(t0)))
                A("v_lshrrev_b32 %s, 5, %s" % (v(t1), v(vLane)))
                A("v_lshl_add_u32 %s, %s, 4, %s" % (v(t0), v(t1), v(t0)))
                A("s_lshl_b32 %s, %s, 2" % (s(sT[3]), s(sB)))
                A("s_add_u32 %s, %s, %s" % (s(sT[3]), s(sT[3]), s(sG)))
                A("s_mul_i32 %s, %s, %d" % (s(sT[3]), s(sT[3]), SLICE))
                A("s_add_u32 %s, %s, %s" % (s(sT[4]), s(sTY), s(sW)))
                A("s_lshl_b32 %s, %s, 6" % (s(sT[4]), s(sT[4])))
                A("s_add_u32 %s, %s, %s" % (s(sT[4]), s(sT[4]), s(sTX)))
                A("s_lshl_b32 %s, %s, 1" % (s(sT[4]), s(sT[4])))
                A("s_add_u32 %s, %s, %s" % (s(sT[3]), s(sT[3]), s(sT[4])))
                srd(A, sE1, S_X, 0, 5242880)
                srd(A, sE2, S_OUT, 0, 5242880)
            out.append(prep)
            for t in range(5):
                def f(t=t):
                    A("s_add_u32 %s, %s, %d" % (s(sT[4]), s(sT[3]), t * 131072))
                    A("buffer_load_dwordx4 %s, %s, %s, %s offen" % (v(vX + 4 * t, 4), v(t0), s(sE1, 4), s(sT[4])))
                    vm.issue("E")
                out.append(f)
        return out

    for m in range(8):
        frag_read(0, m)
    for n in range(NSTEP):
        side = []
        if n + D - 1 < NSTEP:
            side += w_loads(n + D - 1)
        if n < 6:
            side += dma(1, n)
        elif n < 12:
            side += dma(2, n - 6)
        if n == NSTEP - 3:
            side += side_loads()
        every = max(1, 40 // (len(side) + 1)) if side else 1000
        cnt = 0
        for m in range(8):
            r, h = m >> 1, m & 1
            if m == 0:
                vm.need(("W", n))
            lg.need(("F", n, m))
            for t in range(5):
                wv = v(vW[n % D] + 4 * t, 4)
                fv = v(vFr + 4 * m, 4)
                c = "0" if n == 0 else acc(r, h, t)
                if which == 1:
                    A("v_mfma_f32_16x16x32_bf16 %s, %s, %s, %s" % (acc(r, h, t), wv, fv, c))
                else:
                    A("v_mfma_f32_16x16x32_bf16 %s, %s, %s, %s" % (acc(r, h, t), fv, wv, c))
                cnt += 1
                if side and cnt % every == 0:
                    side.pop(0)()
            if n + 1 < NSTEP:
                frag_read(n + 1, m)
        run(side)

    A("v_add_u32 %s, %s, %s" % (v(x1), s(sWB), v(vL16)))
    for r in range(3):
        for i in range(10):
            A("ds_write_b128 %s, %s offset:%d" % (v(x1), a(r * 40 + 4 * i, 4), r * 10240 + i * 1024))
    yb = [t2, t3, x2]
    for d in range(1, 4):
        A("s_sub_u32 %s, %s, %d" % (s(sT[0]), s(sW), d))
        A("s_and_b32 %s, %s, 3" % (s(sT[0]), s(sT[0])))
        A("s_mul_i32 %s, %s, %d" % (s(sT[0]), s(sT[0]), WAVE_LDS))
        A("v_add_u32 %s, %s, %s" % (v(yb[d - 1]), s(sT[0]), v(vL16)))
    A("s_waitcnt lgkmcnt(0)")
    lg.reset_after_wait0()
    A("s_barrier")
    for d in range(3):
        for i in range(10):
            A("ds_read_b128 %s, %s offset:%d" % (v(vPool + 40 * d + 4 * i, 4), v(yb[d]), d * 10240 + i * 1024))
            lg.issue(("R", d, i))
    for d in range(3):
        for i in range(10):
            lg.need(("R", d, i))
            for k in range(2):
                A("v_pk_add_f32 %s, %s, %s" % (v(vO + 4 * i + 2 * k, 2), v(vO + 4 * i + 2 * k, 2),
                                               v(vPool + 40 * d + 4 * i + 2 * k, 2)))
    vm.need("E")
    P = vPool
    if which == 2:
        for t in range(5):
            for r in range(4):
                A("v_permlane16_swap_b32 %s, %s" % (v(vO + 4 * t + r), v(vO + 20 + 4 * t + r)))
        for t in range(5):
            for d in range(4):
                o = vO + (0 if d < 2 else 20) + 4 * t + 2 * (d & 1)
                u = P + 2 * ((t * 4 + d) % 4)
                A("v_lshlrev_b32 %s, 16, %s" % (v(u), v(vX + 4 * t + d)))
                A("v_and_b32 %s, 0xffff0000, %s" % (v(u + 1), v(vX + 4 * t + d)))
                A("v_pk_add_f32 %s, %s, %s" % (v(u, 2), v(u, 2), v(o, 2)))
                A("v_cvt_pk_bf16_f32 %s, %s, %s" % (v(P + 8 + 4 * t + d), v(u), v(u + 1)))
            A("s_add_u32 %s, %s, %d" % (s(sT[4]), s(sT[3]), t * 131072))
            A("buffer_store_dwordx4 %s, %s, %s, %s offen" % (v(P + 8 + 4 * t, 4), v(t0), s(sE2, 4), s(sT[4])))
    else:
        for k in range(20):
            row_sum(A, vX + k)
        for h in range(2):
            for k in range(0, 20, 2):
                A("v_pk_add_f32 %s, %s, %s" % (v(vO + 20 * h + k, 2), v(vO + 20 * h + k, 2), v(vX + k, 2)))
        S0 = P
        A("v_pk_add_f32 %s, %s, %s" % (v(S0, 2), v(vO, 2), v(vO + 2, 2)))
        A("v_pk_add_f32 %s, %s, %s" % (v(S0 + 2, 2), v(vO + 4, 2), v(vO + 6, 2)))
        for k in range(8, 40, 4):
            A("v_pk_add_f32 %s, %s, %s" % (v(S0, 2), v(S0, 2), v(vO + k, 2)))
            A("v_pk_add_f32 %s, %s, %s" % (v(S0 + 2, 2), v(S0 + 2, 2), v(vO + k + 2, 2)))
        A("v_pk_add_f32 %s, %s, %s" % (v(S0, 2), v(S0, 2), v(S0 + 2, 2)))
        A("v_add_f32 %s, %s, %s" % (v(S0), v(S0), v(S0 + 1)))
        wave_sum(A, S0, S0 + 1)
        NM = P + 2
        A("v_mul_f32 %s, %s, %s" % (v(NM), f32(-1.0 / 2560), v(S0)))
        A("v_mov_b32 %s, %s" % (v(NM + 1), v(NM)))
        Q = P + 4
        for k in range(4):
            A("v_mov_b32 %s, 0" % v(Q + k))
        for k in range(0, 40, 2):
            dd = P + 8 + 2 * ((k // 2) % 4)
            qq = Q + 2 * ((k // 2) % 2)
            A("v_pk_add_f32 %s, %s, %s" % (v(dd, 2), v(vO + k, 2), v(NM, 2)))
            A("v_pk_fma_f32 %s, %s, %s, %s" % (v(qq, 2), v(dd, 2), v(dd, 2), v(qq, 2)))
        A("v_pk_add_f32 %s, %s, %s" % (v(Q, 2), v(Q, 2), v(Q + 2, 2)))
        A("v_add_f32 %s, %s, %s" % (v(Q + 1), v(Q), v(Q + 1)))
        wave_sum(A, Q + 1, S0 + 1)
        A("v_sub_f32 %s, 0, %s" % (v(Q), v(NM)))
        A("v_or_b32 %s, 0x80000000, %s" % (v(Q + 1), v(Q + 1)))
        A("s_lshl_b32 %s, %s, 2" % (s(sT[0]), s(sB)))
        A("s_add_u32 %s, %s, %s" % (s(sT[0]), s(sT[0]), s(sG)))
        A("s_lshl_b32 %s, %s, 10" % (s(sT[1]), s(sT[0])))
        A("s_lshl_b32 %s, %s, 4" % (s(sT[2]), s(sTY)))
        A("s_add_u32 %s, %s, %s" % (s(sT[2]), s(sT[2]), s(sTX)))
        A("s_lshl_b32 %s, %s, 3" % (s(sT[5]), s(sW)))
        A("s_add_u32 %s, %s, %s" % (s(sT[2]), s(sT[2]), s(sT[5])))
        A("s_add_u32 %s, %s, %s" % (s(sT[2]), s(sT[2]), s(sT[1])))
        srd(A, sE4, S_WS, ST2_OFF, 8192)
        A("v_mov_b32 %s, 0" % v(S0))
        A("s_mov_b64 exec, 1")
        A("buffer_store_dwordx2 %s, %s, %s, %s offen sc0 sc1" % (v(Q, 2), v(S0), s(sE4, 4), s(sT[2])))
        A("s_mov_b64 exec, -1")
        GA, BE = P + 16, P + 36
        for e, dst in enumerate((GA, BE)):
            base = vX + 20 + 10 * e
            for d in range(10):
                A("v_lshlrev_b32 %s, 16, %s" % (v(dst + 2 * d), v(base + d)))
                A("v_and_b32 %s, 0xffff0000, %s" % (v(dst + 2 * d + 1), v(base + d)))
        A("s_mul_i32 %s, %s, %d" % (s(sT[0]), s(sT[0]), SLICE))
        A("s_add_u32 %s, %s, %d" % (s(sT[0]), s(sT[0]), A2_OFF))
        srd(A, sE5, S_WS, s(sT[0]), SLICE)
        A("s_add_u32 %s, %s, %s" % (s(sT[4]), s(sTY), s(sW)))
        A("s_lshl_b32 %s, %s, 6" % (s(sT[4]), s(sT[4])))
        A("s_add_u32 %s, %s, %s" % (s(sT[4]), s(sT[4]), s(sTX)))
        A("v_and_b32 %s, 15, %s" % (v(t0), v(vLane)))
        A("v_add_u32 %s, %s, %s" % (v(t0), s(sT[4]), v(t0)))
        A("v_lshrrev_b32 %s, 4, %s" % (v(t1), v(vLane)))
        A("v_bfe_u32 %s, %s, 2, 1" % (v(t2), v(vLane)))
        A("v_lshlrev_b32 %s, 1, %s" % (v(t2), v(t2)))
        A("v_xor_b32 %s, %s, %s" % (v(t2), v(t2), v(t1)))
        A("v_lshlrev_b32 %s, 4, %s" % (v(t2), v(t2)))
        A("v_lshl_add_u32 %s, %s, 6, %s" % (v(t2), v(t0), v(t2)))
        A("v_lshlrev_b32 %s, 3, %s" % (v(t3), v(t1)))
        A("v_lshl_add_u32 %s, %s, 5, %s" % (v(t3), v(t0), v(t3)))
        A("s_mov_b32 %s, %d" % (s(sT[3]), P1))
        A("s_mov_b32 %s, %d" % (s(sT[4]), P2))
        G = P + 56
        A("s_mov_b32 %s, 0" % s(sT[5]))
        A.label(L + "poll")
        A("buffer_load_dwordx4 %s, %s, %s, %s offen sc0 sc1" % (v(G, 4), v(vL16), s(sE4, 4), s(sT[1])))
        A("s_add_u32 %s, %s, 1" % (s(sT[5]), s(sT[5])))
        A("s_waitcnt vmcnt(0)")
        A("v_and_b32 %s, %s, %s" % (v(G + 4), v(G + 1), v(G + 3)))
        A("v_cmp_gt_i32 vcc, 0, %s" % v(G + 4))
        A("s_cmp_eq_u64 vcc, -1")
        A("s_cbranch_scc1 %spolled" % L)
        A("s_cmp_lt_u32 %s, 0x200000" % s(sT[5]))
        A("s_cbranch_scc1 %spoll" % L)
        A.label(L + "polled")
        vm.reset_after_wait0()
        combine_stats(A, G, G + 4, 2560, 327680, tagged=True)
        GA2, BE2 = P + 64, P + 84
        for c in range(20):
            A("v_mul_f32 %s, %s, %s" % (v(GA + c), v(GA + c), v(G + 1)))
            A("v_fma_f32 %s, -%s, %s, %s" % (v(BE + c), v(G), v(GA + c), v(BE + c)))
            A("v_mul_f32 %s, %s, %s" % (v(GA2 + c), f32(-LOG2E), v(GA + c)))
            A("v_mul_f32 %s, %s, %s" % (v(BE2 + c), f32(-LOG2E), v(BE + c)))
        OUT = vX
        for h in range(2):
            ob = OUT + 12 * h
            for k in range(0, 20, 2):
                y = vO + 20 * h + k
                tt = P + 104 + 2 * ((k // 2) % 4)
                A("v_pk_fma_f32 %s, %s, %s, %s" % (v(tt, 2), v(y, 2), v(GA2 + k, 2), v(BE2 + k, 2)))
                A("v_pk_fma_f32 %s, %s, %s, %s" % (v(y, 2), v(y, 2), v(GA + k, 2), v(BE + k, 2)))
                silu_pair(A, y, tt)
                A("v_cvt_pk_bf16_f32 %s, %s, %s" % (v(ob + k // 2), v(y), v(y + 1)))
            A("buffer_store_dwordx4 %s, %s, %s, 0 offen offset:%d" % (v(ob, 4), v(t2), s(sE5, 4), h * 1024))
            A("buffer_store_dwordx4 %s, %s, %s, %s offen offset:%d" % (v(ob + 4, 4), v(t2), s(sE5, 4), s(sT[3]), h * 1024))
            A("buffer_store_dwordx2 %s, %s, %s, %s offen offset:%d" % (v(ob + 8, 2), v(t3), s(sE5, 4), s(sT[4]), h * 512))
    A.label(L + "end")
    A("s_endpgm")
    nv = (VA.hi + 3) // 4 * 4
    return header(name) + A.finalize() + descriptor(name, nv + 120, nv)


HEAD = """; adm_resblock: GN+SiLU -> conv3x3 -> +emb -> GN+SiLU -> conv3x3 -> +x  (generated by work/gen.py)
; @launch kernel=prep_kernel grid=(396,1,1) block=(256,1,1) lds=0
; @launch kernel=norm1_kernel grid=(256,1,1) block=(320,1,1) lds=0
; @launch kernel=conv1_kernel grid=(256,1,1) block=(256,1,1) lds=%d
; @launch kernel=conv2_kernel grid=(256,1,1) block=(256,1,1) lds=%d
.amdgcn_target "amdgcn-amd-amdhsa--gfx950"
.text
"""


def build(opt):
    txt = HEAD % (CONV_LDS, CONV_LDS)
    txt += gen_prep()
    txt += gen_norm1()
    txt += gen_conv(1, opt)
    txt += gen_conv(2, opt)
    return txt


if __name__ == "__main__":
    opt = {}
    out = "standalone__adm_resblock__diffusion.s"
    for arg in sys.argv[1:]:
        k, val = arg.split("=")
        if k == "out":
            out = val
        else:
            opt[k] = int(val)
    open(out, "w").write(build(opt))
    print("wrote", out)
```

```python
import sys
import struct
from asmlib import Asm, Counter, RegAlloc, v, s, a

SLICE = 655360
P1 = 262144
P2 = 524288
A1_OFF = 0
A2_OFF = 8 * SLICE
NSTEP = 23
WSTREAM = NSTEP * 5120
WPSZ = 16 * WSTREAM
WP1_OFF = 16 * SLICE
WP2_OFF = WP1_OFF + WPSZ
ST1_OFF = WP2_OFF + WPSZ
ST2_OFF = ST1_OFF + 16384
EMB_OFF = ST2_OFF + 8192
DBG_OFF = EMB_OFF + 40960
HUGE = 0x40000000
SPIN_MAX = 0x200000
WIN = 0x10000000

TAPS = [(0, 1), (0, 0), (0, 2), (1, 1), (1, 0), (1, 2), (2, 1), (2, 0), (2, 2)]
PAIRS = [((0, 0), (0, 1), 0), ((1, 0), (1, 1), 0), ((2, 0), (2, 1), 0), ((0, 2), (1, 2), 1), ((2, 2), None, 2)]

LOG2E = 1.4426950408889634


def f32(x):
    return "0x%08x" % struct.unpack("<I", struct.pack("<f", x))[0]


S_X, S_TE, S_G1, S_B1, S_W1, S_WE, S_G2, S_B2, S_W2, S_OUT, S_DBG, S_WS = range(4, 28, 2)


def load_kernargs(A):
    A("s_load_dwordx16 s[4:19], s[0:1], 0")
    A("s_load_dwordx8 s[20:27], s[0:1], 64")


def srd(A, d, base, off, nrec):
    if off == 0:
        A("s_mov_b32 %s, %s" % (s(d), s(base)))
        A("s_mov_b32 %s, %s" % (s(d + 1), s(base + 1)))
    else:
        A("s_add_u32 %s, %s, %s" % (s(d), s(base), off))
        A("s_addc_u32 %s, %s, 0" % (s(d + 1), s(base + 1)))
    A("s_mov_b32 %s, %s" % (s(d + 2), nrec))
    A("s_mov_b32 %s, 0x00020000" % s(d + 3))


DPP_STEPS = ("quad_perm:[1,0,3,2]", "quad_perm:[2,3,0,1]", "row_half_mirror", "row_mirror")


def row_sum(A, regs):
    if not isinstance(regs, (list, tuple)):
        regs = [regs]
    for mod in DPP_STEPS:
        for r in regs:
            A("v_add_f32_dpp %s, %s, %s %s row_mask:0xf bank_mask:0xf" % (v(r), v(r), v(r), mod))


def wave_sum(A, regs, tmps):
    if not isinstance(regs, (list, tuple)):
        regs, tmps = [regs], [tmps]
    row_sum(A, regs)
    for op in ("v_permlane16_swap_b32", "v_permlane32_swap_b32"):
        for r, t in zip(regs, tmps):
            A("v_mov_b32 %s, %s" % (v(t), v(r)))
        for r, t in zip(regs, tmps):
            A("%s %s, %s" % (op, v(r), v(t)))
        for r, t in zip(regs, tmps):
            A("v_add_f32 %s, %s, %s" % (v(r), v(r), v(t)))


def header(name):
    return ".globl %s\n.p2align 8\n.type %s,@function\n%s:\n" % (name, name, name)


def descriptor(name, nvgpr, accum, nsgpr=96):
    return """.section .rodata,"a"
.p2align 6
.amdhsa_kernel %s
  .amdhsa_next_free_vgpr %d
  .amdhsa_next_free_sgpr %d
  .amdhsa_accum_offset %d
  .amdhsa_group_segment_fixed_size 0
  .amdhsa_kernarg_size 96
  .amdhsa_user_sgpr_count 2
  .amdhsa_user_sgpr_kernarg_segment_ptr 1
  .amdhsa_system_sgpr_workgroup_id_x 1
.end_amdhsa_kernel
.text
""" % (name, nvgpr, nsgpr, accum)


def silu_batch(A, pairs, tmp, kpair, dst):
    n = len(pairs)
    for i, p in enumerate(pairs):
        A("v_exp_f32 %s, %s" % (v(tmp + 2 * i), v(p)))
        A("v_exp_f32 %s, %s" % (v(tmp + 2 * i + 1), v(p + 1)))
    for i in range(n):
        A("v_pk_fma_f32 %s, %s, %s, %s" % (v(tmp + 2 * i, 2), v(tmp + 2 * i, 2), v(kpair, 2), v(kpair, 2)))
    for i in range(n):
        A("v_rcp_f32 %s, %s" % (v(tmp + 2 * i), v(tmp + 2 * i)))
        A("v_rcp_f32 %s, %s" % (v(tmp + 2 * i + 1), v(tmp + 2 * i + 1)))
    for i, p in enumerate(pairs):
        A("v_pk_mul_f32 %s, %s, %s" % (v(tmp + 2 * i, 2), v(tmp + 2 * i, 2), v(p, 2)))
    for i in range(n):
        A("v_cvt_pk_bf16_f32 %s, %s, %s" % (v(dst[i]), v(tmp + 2 * i), v(tmp + 2 * i + 1)))


class Stamper:
    def __init__(self, A, on, vst, region, sst=94, ssrd=88, lg=None):
        self.A, self.on, self.vst, self.region = A, on, vst, region
        self.sst, self.ssrd, self.lg = sst, ssrd, lg
        self.pending = None

    def start(self):
        if not self.on:
            return
        self.A("v_mov_b32 %s, 0" % v(self.vst))
        self(32, True)
        self(0)
        self(None)

    def __call__(self, idx, real=False):
        if not self.on:
            return
        A = self.A
        if self.pending is not None:
            A("s_waitcnt lgkmcnt(0)")
            if self.lg:
                self.lg.reset_after_wait0()
            A("v_writelane_b32 %s, %s, %d" % (v(self.vst), s(self.sst), self.pending))
        self.pending = None
        if idx is None:
            return
        A("%s %s" % ("s_memrealtime" if real else "s_memtime", s(self.sst, 2)))
        self.pending = idx

    def now(self, idx):
        self(idx)
        self(None)

    def finish(self, nwaves, role, swave, vlane):
        if not self.on:
            return
        A = self.A
        A("s_mov_b64 exec, -1")
        A("s_waitcnt vmcnt(0)")
        self(31)
        self(33, True)
        self(None)
        A("s_mov_b32 %s, %d" % (s(self.sst), role))
        A("v_writelane_b32 %s, %s, 34" % (v(self.vst), s(self.sst)))
        srd(A, self.ssrd, S_WS, DBG_OFF + self.region * 1048576, 1048576)
        A("s_mul_i32 %s, s2, %d" % (s(self.sst), nwaves))
        A("s_add_u32 %s, %s, %s" % (s(self.sst), s(self.sst), s(swave)))
        A("s_lshl_b32 %s, %s, 8" % (s(self.sst), s(self.sst)))
        A("v_lshlrev_b32 %s, 2, %s" % (v(vlane), v(vlane)))
        A("buffer_store_dword %s, %s, %s, %s offen" % (v(self.vst), v(vlane), s(self.ssrd, 4), s(self.sst)))


def poll_loop(A, L, nsets, nl, issue, check, copy, scnt):
    A("s_mov_b32 %s, 0" % s(scnt))
    for i in range(nsets):
        issue(i)
    A.label(L + "_loop")
    for i in range(nsets):
        A("s_waitcnt vmcnt(%d)" % ((nsets - 1) * nl))
        check(i)
        A("s_cbranch_scc1 %s_ok%d" % (L, i))
        issue(i)
    A("s_add_u32 %s, %s, 1" % (s(scnt), s(scnt)))
    A("s_cmp_lt_u32 %s, %d" % (s(scnt), SPIN_MAX))
    A("s_cbranch_scc1 %s_loop" % L)
    A("s_waitcnt vmcnt(0)")
    for i in range(nsets):
        A.label("%s_ok%d" % (L, i))
        copy(i)
        if i + 1 < nsets:
            A("s_branch %s_done" % L)
    A.label(L + "_done")


def code_prefetch(A, spair, sidx, stmp, label, nlines_mask, endlabel):
    A("s_getpc_b64 %s" % s(spair, 2))
    A.label(label + "_pc")
    A("s_and_b32 %s, %s, %d" % (s(stmp), s(sidx), nlines_mask))
    A("s_lshl_b32 %s, %s, 7" % (s(stmp), s(stmp)))
    A("s_min_u32 %s, %s, %s-%s_pc" % (s(stmp), s(stmp), endlabel, label))
    A("s_load_dword %s, %s, %s" % (s(stmp), s(spair, 2), s(stmp)))


RROW = 592


def repack_decode(A, sU, sr):
    sCP, sT, sCV, sGG, sWW, s0, s1, s2_ = sr
    A("s_mov_b32 %s, 0" % s(sCP))
    A("s_cmp_ge_u32 %s, 160" % s(sU))
    A("s_addc_u32 %s, %s, 0" % (s(sCP), s(sCP)))
    A("s_cmp_ge_u32 %s, 320" % s(sU))
    A("s_addc_u32 %s, %s, 0" % (s(sCP), s(sCP)))
    A("s_mul_i32 %s, %s, 160" % (s(s0), s(sCP)))
    A("s_sub_u32 %s, %s, %s" % (s(s0), s(sU), s(s0)))
    A("s_lshr_b32 %s, %s, 5" % (s(sT), s(s0)))
    A("s_bfe_u32 %s, %s, 0x10004" % (s(sCV), s(s0)))
    A("s_bfe_u32 %s, %s, 0x20002" % (s(sGG), s(s0)))
    A("s_and_b32 %s, %s, 3" % (s(sWW), s(s0)))
    A("s_lshl_b32 %s, %s, 4" % (s(s0), s(sT)))
    A("s_lshr_b32 %s, %s, 1" % (s(s2_), s(sT)))
    A("s_lshl_b32 %s, %s, 5" % (s(s2_), s(s2_)))
    A("s_and_b32 %s, %s, 1" % (s(s1), s(sT)))
    A("s_lshl_b32 %s, %s, 2" % (s(s1), s(s1)))
    A("s_add_u32 %s, %s, %s" % (s(s2_), s(s2_), s(s1)))
    A("s_cmp_lt_u32 %s, 4" % s(sT))
    A("s_cselect_b32 %s, 1, 0" % s(s1))
    A("s_andn2_b32 %s, %s, %s" % (s(s1), s(s1), s(sCV)))
    A("s_cmp_lg_u32 %s, 0" % s(s1))
    A("s_cselect_b32 %s, %s, %s" % (s(s0), s(s2_), s(s0)))
    A("s_cselect_b32 %s, 8, 4" % s(s1))
    A("s_mul_i32 %s, %s, 80" % (s(s2_), s(sGG)))
    A("s_add_u32 %s, %s, %s" % (s(s0), s(s0), s(s2_)))


def repack_dma(A, vl16, sr, sA, ldsbase, sL, bar_at=None):
    sCP, sT, sCV, sGG, sWW, s0, s1, s2_ = sr
    A("s_mul_i32 %s, %s, 5760" % (s(s0), s(s0)))
    A("s_mul_i32 %s, %s, 1440" % (s(s2_), s(sWW)))
    A("s_add_u32 %s, %s, %s" % (s(s0), s(s0), s(s2_)))
    A("s_mul_i32 %s, %s, 576" % (s(s2_), s(sCP)))
    A("s_add_u32 %s, %s, %s" % (s(s0), s(s0), s(s2_)))
    A("s_sub_u32 %s, %s, 3" % (s(s1), s(s1)))
    A("s_mul_i32 %s, %s, 5760" % (s(s1), s(s1)))
    A("s_cmp_eq_u32 %s, 0" % s(sCV))
    A("s_cselect_b32 %s, %s, %s" % (s(sA), s(S_W1), s(S_W2)))
    A("s_cselect_b32 %s, %s, %s" % (s(sA + 1), s(S_W1 + 1), s(S_W2 + 1)))
    A("s_mov_b32 %s, 1843200" % s(sA + 2))
    A("s_mov_b32 %s, 0x00020000" % s(sA + 3))
    A("s_cmp_eq_u32 %s, 2" % s(sCP))
    A("s_cselect_b32 exec_lo, 0x3ffff, -1")
    A("s_cselect_b32 exec_hi, 0, 15")
    for r in range(16):
        if r == bar_at:
            A("s_barrier")
        A("s_add_u32 m0, %s, %d" % (s(sL), ldsbase + r * RROW))
        if r == 0:
            A("s_nop 0")
        elif r % 4 == 0:
            A("s_add_u32 %s, %s, %s" % (s(s0), s(s0), s(s1)))
        else:
            A("s_add_u32 %s, %s, 5760" % (s(s0), s(s0)))
        A("buffer_load_dwordx4 %s, %s, %s offen lds" % (v(vl16), s(sA, 4), s(s0)))
    A("s_mov_b64 exec, -1")


def repack_read(A, vlane, sr, sp, sD, va, RAW, ldsbase, sL):
    sCP, sT, sCV, sGG, sWW, s0, s1, s2_ = sr
    v4, v5, v6 = va, va + 1, va + 2
    A("v_and_b32 %s, 15, %s" % (v(v4), v(vlane)))
    A("v_mul_u32_u24 %s, %d, %s" % (v(v4), RROW, v(v4)))
    A("v_lshrrev_b32 %s, 4, %s" % (v(v5), v(vlane)))
    A("v_and_b32 %s, 1, %s" % (v(v6), v(v5)))
    A("s_cmp_eq_u32 %s, 2" % s(sCP))
    A("s_cselect_b64 %s, -1, 0" % s(sp, 2))
    A("v_cndmask_b32 %s, %s, %s, %s" % (v(v5), v(v5), v(v6), s(sp, 2)))
    A("v_mul_u32_u24 %s, 144, %s" % (v(v5), v(v5)))
    A("v_add3_u32 %s, %s, %s, %s" % (v(v4), v(v4), v(v5), s(sL)))
    for j in range(9):
        A("ds_read_b128 %s, %s offset:%d" % (v(RAW + 4 * j, 4), v(v4), ldsbase + 16 * j))
    A("s_lshl_b32 %s, %s, 2" % (s(s1), s(sGG)))
    A("s_add_u32 %s, %s, %s" % (s(s1), s(s1), s(sWW)))
    A("s_mul_i32 %s, %s, %d" % (s(s1), s(s1), WSTREAM))
    A("s_mul_i32 %s, %s, %d" % (s(s0), s(sCV), WPSZ))
    A("s_add_u32 %s, %s, %s" % (s(s1), s(s1), s(s0)))
    A("s_add_u32 %s, %s, %d" % (s(s1), s(s1), WP1_OFF))
    srd(A, sD, S_WS, s(s1), WSTREAM)
    A("s_mul_i32 %s, %s, %d" % (s(sGG), s(sCP), 9 * 5120))
    A("s_lshl_b32 %s, %s, 10" % (s(s0), s(sT)))
    A("s_add_u32 %s, %s, %s" % (s(sGG), s(sGG), s(s0)))
    A("v_lshlrev_b32 %s, 4, %s" % (v(v5), v(vlane)))
    A("s_waitcnt lgkmcnt(0)")


def repack_finish(A, L, sr, sp, sD, va, RAW, T, fl=""):
    sCP, sT, sCV, sGG, sWW, s0, s1, s2_ = sr
    v5 = va + 1
    A("s_mov_b32 %s, 0x07060100" % s(s0))
    A("s_mov_b32 %s, 0x05040302" % s(s1))
    src = lambda i: RAW + (i >> 1)

    def tr(tap, dst):
        for d in range(4):
            i0 = 18 * d + tap
            i1 = i0 + 9
            sel = s(s0) if tap % 2 == 0 else s(s1)
            A("v_perm_b32 %s, %s, %s, %s" % (v(dst + d), v(src(i1)), v(src(i0)), sel))
    A("s_cmp_eq_u32 %s, 2" % s(sCP))
    A("s_cbranch_scc1 %sB" % L)
    for idx, (i, j) in enumerate(TAPS):
        dst = T + 4 * (idx % 3)
        tr(3 * i + j, dst)
        A("s_add_u32 %s, %s, %d" % (s(s2_), s(sGG), idx * 5120))
        A("buffer_store_dwordx4 %s, %s, %s, %s offen%s" % (v(dst, 4), v(v5), s(sD, 4), s(s2_), fl))
    A("s_branch %sE" % L)
    A.label(L + "B")
    A("s_mov_b32 %s, 0" % s(sp))
    A("s_mov_b32 %s, -1" % s(sp + 1))
    for k, (t1, t2, _) in enumerate(PAIRS):
        da = T + 4 * (k % 2)
        tr(3 * t1[0] + t1[1], da)
        if t2 is not None:
            tr(3 * t2[0] + t2[1], T + 8)
        for d in range(4):
            A("v_cndmask_b32 %s, %s, %s, %s" % (v(da + d), v(da + d), "0" if t2 is None else v(T + 8 + d), s(sp, 2)))
        A("s_add_u32 %s, %s, %d" % (s(s2_), s(sGG), k * 5120))
        A("buffer_store_dwordx4 %s, %s, %s, %s offen%s" % (v(da, 4), v(v5), s(sD, 4), s(s2_), fl))
    A.label(L + "E")


NMAIN = 256
MISC1 = 20480
RAW_LDS = MISC1 + 128
PREP_LDS = RAW_LDS + 2 * 16 * RROW


def gen_prep(opt):
    A = Asm()
    ST = Stamper(A, opt.get("stamp", 0), 75, 2, sst=96, ssrd=92)
    NEM = 0
    MISC = MISC1
    RSR = list(range(80, 88))
    A("s_cmp_ge_u32 s2, %d" % (NMAIN + NEM))
    A("s_cbranch_scc1 L_prep_end")
    ST.start()
    load_kernargs(A)
    A("v_lshrrev_b32 v2, 6, v0")
    A("v_and_b32 v3, 63, v0")
    A("v_readfirstlane_b32 s3, v2")
    A("s_lshl_b32 s28, s2, 4")
    A("s_or_b32 s28, s28, s3")
    A("s_cmp_lg_u32 s28, 10")
    A("s_cbranch_scc1 L_prep_not0")
    if opt.get("ndelay", 0):
        for _ in range(opt["ndelay"]):
            A("s_sleep 127")
    A("s_memrealtime s[40:41]")
    A("v_mov_b32 v1, 0")
    A("s_mov_b64 exec, 1")
    A("s_waitcnt lgkmcnt(0)")
    srd(A, 60, S_DBG, 0, 256)
    A("v_mov_b32 v40, s40")
    A("v_mov_b32 v41, s41")
    A("buffer_store_dwordx2 v[40:41], v1, s[60:63], 0 offen sc0 sc1")
    A("s_endpgm")
    A.label("L_prep_not0")
    A("s_cmp_eq_u32 s3, 12")
    A("s_cbranch_scc1 L_prep_emb")
    A("s_cmp_ge_u32 s3, 10")
    A("s_cbranch_scc1 L_prep_help")
    A("s_lshl_b32 m0, s3, 11")
    A("s_lshr_b32 s28, s2, 5")
    A("s_and_b32 s29, s2, 31")
    A("s_and_b32 s34, s3, 3")
    A("s_lshl_b32 s34, s34, 1")
    A("s_and_b32 s35, s3, 1")
    A("s_lshl_b32 s35, s35, 2")
    A("s_cmp_lt_u32 s3, 8")
    A("s_cselect_b32 s34, s34, s35")
    A("v_subrev_u32 v5, s34, v3")
    A("v_and_b32 v5, 15, v5")
    A("v_lshlrev_b32 v5, 4, v5")
    A("v_lshrrev_b32 v7, 4, v3")
    A("v_lshl_add_u32 v5, v7, 13, v5")
    A("s_lshl_b32 s32, s3, 16")
    A("s_lshl_b32 s35, s29, 8")
    A("s_add_u32 s32, s32, s35")
    A("s_add_u32 s33, s32, %d" % (4 * 8192 - 1024))
    A("s_mul_i32 s34, s28, %d" % SLICE)
    A("v_mov_b32 v1, 0")
    A("s_cmp_ge_u32 s3, 8")
    A("s_cbranch_scc1 L_prep_p2")
    A("s_lshr_b32 s35, s3, 2")
    A("s_and_b32 s30, s3, 3")
    A("v_and_b32 v4, 3, v3")
    A("v_lshrrev_b32 v9, 2, v3")
    A("v_and_b32 v6, 2, v9")
    A("v_xor_b32 v6, v6, v4")
    A("v_lshlrev_b32 v6, 4, v6")
    A("s_lshl_b32 s37, s29, 7")
    A("s_lshl_b32 s38, s30, 5")
    A("s_add_u32 s37, s37, s38")
    A("v_lshl_add_u32 v7, v9, 1, s37")
    A("v_lshl_add_u32 v6, v7, 6, v6")
    A("s_lshl_b32 s36, s35, 18")
    A("v_add_u32 v6, s36, v6")
    A("v_lshrrev_b32 v8, 2, v9")
    A("v_lshl_add_u32 v8, v4, 1, v8")
    A("s_lshl_b32 s37, s30, 2")
    A("v_add_u32 v8, s37, v8")
    A("s_lshl_b32 s36, s35, 2")
    A("v_add_u32 v4, s36, v4")
    A("s_movk_i32 s31, 64")
    A("s_branch L_prep_go")
    A.label("L_prep_p2")
    A("s_and_b32 s30, s3, 1")
    A("v_and_b32 v4, 1, v3")
    A("v_lshrrev_b32 v9, 1, v3")
    A("s_lshl_b32 s37, s29, 7")
    A("s_lshl_b32 s38, s30, 6")
    A("s_add_u32 s37, s37, s38")
    A("v_lshl_add_u32 v7, v9, 1, s37")
    A("v_lshlrev_b32 v6, 4, v4")
    A("v_lshl_add_u32 v6, v7, 5, v6")
    A("v_add_u32 v6, %d, v6" % P2)
    A("v_lshrrev_b32 v8, 2, v9")
    A("v_lshl_add_u32 v8, v4, 2, v8")
    A("s_lshl_b32 s37, s30, 3")
    A("v_add_u32 v8, s37, v8")
    A("v_add_u32 v4, 8, v4")
    A("s_movk_i32 s31, 32")
    A.label("L_prep_go")
    A("s_waitcnt lgkmcnt(0)")
    ST.now(1)
    srd(A, 44, S_X, "s34", SLICE)
    A("buffer_load_dwordx4 v5, s[44:47], s32 offen lds")
    A("buffer_load_dwordx4 v5, s[44:47], s33 offen offset:1024 lds")
    A("v_and_b32 v8, 15, v8")
    A("v_lshlrev_b32 v8, 4, v8")
    A("v_lshl_add_u32 v8, v4, 11, v8")
    A("v_and_b32 v9, 3, v9")
    A("v_lshl_add_u32 v8, v9, 2, v8")
    A("v_lshlrev_b32 v4, 4, v4")
    A("s_and_b32 s36, s28, 3")
    A("s_mul_i32 s36, s36, 160")
    if opt.get("cpf", 1):
        A("s_lshr_b32 s37, s2, 3")
        A("s_lshl_b32 s37, s37, 1")
        A("s_add_u32 s37, s37, s3")
        code_prefetch(A, 90, 37, 89, "L_prep", 63, "L_prep_end")
    srd(A, 60, S_DBG, 0, 256)
    A("s_lshl_b32 s35, s28, 9")
    A("s_add_u32 s35, s35, %d" % ST1_OFF)
    srd(A, 64, S_WS, "s35", 512)
    A("s_cmp_lg_u32 s3, 0")
    A("s_cbranch_scc1 L_prep_notouch")
    A("buffer_load_dword v40, v1, s[60:63], 0 offen offset:128")
    A("buffer_load_dword v41, v1, s[64:67], 0 offen sc0 sc1")
    A.label("L_prep_notouch")
    srd(A, 48, S_G1, 0, 640)
    srd(A, 52, S_B1, 0, 640)
    A("buffer_load_dwordx4 v[16:19], v4, s[48:51], s36 offen")
    A("buffer_load_dwordx4 v[20:23], v4, s[52:55], s36 offen")
    srd(A, 56, S_WS, "s34", SLICE)
    A("v_add_u32 v7, s31, v6")
    NV = 128
    A("s_cmp_lg_u32 s3, 0")
    A("s_cbranch_scc1 L_prep_non0")
    A("ds_write_b32 v1, v1 offset:%d" % (MISC + 104))
    A("s_waitcnt vmcnt(4) lgkmcnt(0)")
    A("buffer_load_dwordx2 v[40:41], v1, s[60:63], 0 offen")
    A("s_branch L_prep_non")
    A.label("L_prep_non0")
    A("s_waitcnt vmcnt(2)")
    A.label("L_prep_non")
    A("s_barrier")
    ST.now(2)
    X = 64
    A("ds_read_b32 v9, v1")
    for k in range(8):
        A("ds_read_b32 %s, v8 offset:%d" % (v(X + k), 256 * k))
    F = 24
    A("s_waitcnt lgkmcnt(8)")
    A("v_lshlrev_b32 v9, 16, v9")
    A("v_xor_b32 v10, 0x80000000, v9")
    A("v_xor_b32 v11, 0x80000000, v9")
    for k in range(8):
        A("s_waitcnt lgkmcnt(%d)" % (7 - k))
        A("v_lshlrev_b32 %s, 16, %s" % (v(F + k), v(X + k)))
        A("v_and_b32 %s, 0xffff0000, %s" % (v(F + 8 + k), v(X + k)))
    for k in range(0, 16, 2):
        A("v_pk_add_f32 %s, %s, v[10:11]" % (v(F + k, 2), v(F + k, 2)))
    S1, S2 = 44, 46
    A("v_pk_add_f32 %s, %s, %s" % (v(S1, 2), v(F, 2), v(F + 2, 2)))
    A("v_pk_mul_f32 %s, %s, %s" % (v(S2, 2), v(F, 2), v(F, 2)))
    for k in range(2, 16, 2):
        if k >= 4:
            A("v_pk_add_f32 %s, %s, %s" % (v(S1, 2), v(S1, 2), v(F + k, 2)))
        A("v_pk_fma_f32 %s, %s, %s, %s" % (v(S2, 2), v(F + k, 2), v(F + k, 2), v(S2, 2)))
    A("v_add_f32 v44, v44, v45")
    A("v_add_f32 v45, v46, v47")
    wave_sum(A, [44, 45], [46, 47])
    A("v_lshlrev_b32 v2, 3, v2")
    A("ds_write_b64 v2, v[44:45] offset:%d" % MISC)
    A("s_waitcnt lgkmcnt(0)")
    A("s_barrier")
    ST.now(3)
    KP = 42
    GA, BE = 48, 56
    RAW, RVA = 76, 112
    A("s_cmp_lg_u32 s3, 0")
    A("s_cbranch_scc1 L_prep_notw0")
    A("v_and_b32 v2, 15, v3")
    A("v_lshlrev_b32 v2, 3, v2")
    A("ds_read_b64 v[64:65], v2 offset:%d" % MISC)
    A("v_cmp_gt_u32 vcc, 80, v2")
    A("s_memrealtime s[42:43]")
    A("s_waitcnt lgkmcnt(0)")
    A("s_mul_i32 s40, s43, 0x9e3779b1")
    A("s_add_u32 s40, s40, s42")
    A("v_cndmask_b32 v64, 0, v64, vcc")
    A("v_cndmask_b32 v65, 0, v65, vcc")
    row_sum(A, [64, 65])
    A("v_mul_f32 v66, %s, v64" % f32(1.0 / 10240))
    A("v_fma_f32 v70, -v66, v64, v65")
    A("v_add_f32 v68, v9, v66")
    A("v_max_f32 v70, 0, v70")
    A("v_mov_b32 v69, s42")
    A("v_mov_b32 v71, s40")
    A("s_lshl_b32 s38, s29, 4")
    A("s_mov_b64 exec, 1")
    A("buffer_store_dwordx4 v[68:71], v1, s[64:67], s38 offen sc0 sc1")
    A("s_mov_b64 exec, -1")
    A("s_waitcnt vmcnt(1)")
    A("s_branch L_prep_pub_done")
    A.label("L_prep_notw0")
    A("s_waitcnt vmcnt(0)")
    A.label("L_prep_pub_done")
    ST.now(4)
    if opt.get("xpf", 0):
        A("s_lshr_b32 s89, s2, 3")
        A("s_mul_i32 s89, s89, 10")
        A("s_add_u32 s89, s89, s3")
        A("s_lshl_b32 s89, s89, 7")
        A("s_add_u32 s89, s89, conv1_kernel-L_prep_pc")
        A("s_min_u32 s89, s89, L_c2_end-L_prep_pc")
        A("s_load_dword s89, s[90:91], s89")
    A("v_mov_b32 %s, %s" % (v(KP), f32(-LOG2E)))
    A("v_mov_b32 %s, %s" % (v(KP + 1), f32(-LOG2E)))
    for d in range(4):
        A("v_lshlrev_b32 %s, 16, %s" % (v(GA + 2 * d), v(16 + d)))
        A("v_and_b32 %s, 0xffff0000, %s" % (v(GA + 2 * d + 1), v(16 + d)))
        A("v_lshlrev_b32 %s, 16, %s" % (v(BE + 2 * d), v(20 + d)))
        A("v_and_b32 %s, 0xffff0000, %s" % (v(BE + 2 * d + 1), v(20 + d)))
    for d in range(4):
        A("v_pk_mul_f32 %s, %s, %s" % (v(GA + 2 * d, 2), v(GA + 2 * d, 2), v(KP, 2)))
        A("v_pk_mul_f32 %s, %s, %s" % (v(BE + 2 * d, 2), v(BE + 2 * d, 2), v(KP, 2)))
    for k in range(0, 16, 2):
        A("v_pk_mul_f32 %s, %s, %s" % (v(F + k, 2), v(F + k, 2), v(GA + (k & 7), 2)))
    A("s_cmp_lg_u32 s3, 0")
    A("s_cbranch_scc1 L_prep_wait")
    A("v_and_b32 v2, 31, v3")
    A("v_lshlrev_b32 v2, 4, v2")
    A("s_mov_b32 s37, 0")
    A("s_branch L_prep_nchk")
    A.label("L_prep_npoll")
    A("s_waitcnt vmcnt(0)")
    A.label("L_prep_nchk")
    A("v_readfirstlane_b32 s72, v40")
    A("v_readfirstlane_b32 s73, v41")
    A("s_or_b32 s76, s72, s73")
    A("s_cmp_lg_u32 s76, 0")
    A("s_cbranch_scc1 L_prep_ngot")
    A("buffer_load_dwordx2 v[40:41], v1, s[60:63], 0 offen sc0 sc1")
    A("s_add_u32 s37, s37, 1")
    A("s_cmp_lt_u32 s37, %d" % SPIN_MAX)
    A("s_cbranch_scc1 L_prep_npoll")
    A.label("L_prep_ngot")
    ST.now(9)
    A("s_mul_i32 s76, s73, 0x9e3779b1")
    A("v_mov_b32 v40, s76")
    A("s_add_u32 s76, s76, 0x9e3779b1")
    A("v_mov_b32 v41, s76")
    A("s_sub_u32 s37, s42, s72")
    A("s_cmp_lt_u32 s37, 0x%x" % WIN)
    A("s_cbranch_scc1 L_prep_fresh")
    A("s_memrealtime s[42:43]")
    A("s_waitcnt lgkmcnt(0)")
    A("s_mul_i32 s40, s43, 0x9e3779b1")
    A("s_add_u32 s40, s40, s42")
    A("v_mov_b32 v69, s42")
    A("v_mov_b32 v71, s40")
    A("s_mov_b64 exec, 1")
    A("buffer_store_dwordx4 v[68:71], v1, s[64:67], s38 offen sc0 sc1")
    A("s_mov_b64 exec, -1")
    A.label("L_prep_fresh")
    A("s_mov_b32 s77, 0x%x" % WIN)
    NP = opt.get("np1", 2)
    PSL = [76, 84, 92, 100]

    def issue(i):
        A("buffer_load_dwordx4 %s, v2, s[64:67], 0 offen sc0 sc1" % v(PSL[i], 4))

    def check(i):
        b = PSL[i]
        A("v_cmp_gt_u32 vcc, s72, %s" % v(b + 1))
        A("v_sub_u32 %s, %s, %s" % (v(b + 3), v(b + 3), v(b + 1)))
        A("v_subrev_u32 %s, s72, %s" % (v(b + 1), v(b + 1)))
        A("v_cndmask_b32 v73, v40, v41, vcc")
        A("v_cmp_gt_u32 s[74:75], s77, %s" % v(b + 1))
        A("v_cmp_eq_u32 vcc, v73, %s" % v(b + 3))
        A("s_and_b64 s[74:75], s[74:75], vcc")
        A("s_cmp_eq_u64 s[74:75], -1")

    def copy(i):
        b = PSL[i]
        A("v_mov_b32 v64, %s" % v(b))
        A("v_mov_b32 v72, %s" % v(b))
        A("v_mov_b32 v66, %s" % v(b + 2))
    poll_loop(A, "L_prep_poll", NP, 1, issue, check, copy, 37)
    ST.now(5)

    def half_sum(r, t):
        row_sum(A, r)
        A("v_mov_b32 %s, %s" % (v(t), v(r)))
        A("v_permlane16_swap_b32 %s, %s" % (v(r), v(t)))
        A("v_add_f32 %s, %s, %s" % (v(r), v(r), v(t)))
    half_sum(72, 73)
    A("v_mul_f32 v72, %s, v72" % f32(1.0 / 32))
    A("v_sub_f32 v64, v64, v72")
    A("v_mul_f32 v64, v64, v64")
    A("v_fmac_f32 v66, %s, v64" % f32(10240.0))
    half_sum(66, 73)
    A("v_mov_b32 v73, %s" % f32(1e-5))
    A("v_fmac_f32 v73, %s, v66" % f32(1.0 / 327680))
    A("v_rsq_f32 v73, v73")
    A("v_sub_f32 v72, v9, v72")
    A("v_mul_f32 v72, v72, v73")
    A("v_mov_b32 v74, 1")
    A("ds_write_b96 v1, v[72:74] offset:%d" % (MISC + 96))
    A("s_branch L_prep_have")
    A.label("L_prep_wait")
    A("ds_read_b96 v[72:74], v1 offset:%d" % (MISC + 96))
    A("s_waitcnt lgkmcnt(0)")
    A("v_readfirstlane_b32 s37, v74")
    A("s_cmp_lg_u32 s37, 0")
    A("s_cbranch_scc1 L_prep_have")
    A("s_sleep 1")
    A("s_branch L_prep_wait")
    A.label("L_prep_have")
    ST.now(6)
    for d in range(4):
        A("v_pk_fma_f32 %s, %s, v[72:73], %s op_sel_hi:[1,0,1]" % (v(BE + 2 * d, 2), v(GA + 2 * d, 2), v(BE + 2 * d, 2)))
    for k in range(0, 16, 2):
        A("v_pk_fma_f32 %s, %s, v[72:73], %s op_sel:[0,1,0] op_sel_hi:[1,1,1]" % (
            v(F + k, 2), v(F + k, 2), v(BE + (k & 7), 2)))
    for j, O in enumerate((12, 20)):
        silu_batch(A, [F + 8 * j + 2 * d for d in range(4)], 64, KP, [O + d for d in range(4)])
        A("buffer_store_dwordx4 %s, %s, s[56:59], 0 offen%s" % (v(O, 4), v(6 + j), opt.get("st_flags", "")))
    ST.now(7)
    ST.finish(13, 1, 3, 3)
    A("s_endpgm")

    A.label("L_prep_help")
    A("s_sub_u32 s37, s3, 10")
    A("s_cmp_ge_u32 s2, 16")
    A("s_cbranch_scc1 L_prep_help_rp")
    A("s_cmp_ge_u32 s2, 2")
    A("s_cbranch_scc1 L_prep_end")
    A("v_mov_b32 v1, 0")
    A("s_waitcnt lgkmcnt(0)")
    A("s_cmp_eq_u32 s2, 1")
    A("s_cbranch_scc1 L_prep_clr")
    A("s_endpgm")
    A.label("L_prep_clr")
    srd(A, 68, S_WS, ST2_OFF, 2048)
    A("v_lshlrev_b32 v42, 4, v3")
    A("s_lshl_b32 s37, s37, 10")
    for k in range(4):
        A("v_mov_b32 %s, 0" % v(44 + k))
    A("buffer_store_dwordx4 v[44:47], v42, s[68:71], s37 offen")
    A("s_endpgm")
    A.label("L_prep_help_rp")
    A("s_mul_i32 s88, s37, %d" % (16 * RROW))
    A("s_sub_u32 s38, s2, 16")
    A("s_lshl_b32 s38, s38, 1")
    A("s_add_u32 s38, s38, s37")
    A("v_lshlrev_b32 v42, 4, v3")
    repack_decode(A, 38, RSR)
    A("s_waitcnt lgkmcnt(0)")
    ST.now(1)
    RAWLATE = opt.get("rawlate", 0)
    if RAWLATE:
        A("s_barrier")
    repack_dma(A, 42, RSR, 68, RAW_LDS, 88, bar_at=opt.get("rbar", 8))
    if not RAWLATE:
        A("s_barrier")
    ST.now(3)
    A("s_waitcnt vmcnt(0)")
    ST.now(4)
    repack_read(A, 3, RSR, 78, 52, 72, 24, RAW_LDS, 88)
    repack_finish(A, "L_prep_rp", RSR, 78, 52, 72, 24, 60, opt.get("wp_flags", ""))
    ST.now(5)
    ST.finish(13, 1, 3, 3)
    A("s_endpgm")

    A.label("L_prep_emb")
    A("s_cmp_ge_u32 s2, 60")
    A("s_cbranch_scc1 L_prep_end")
    if ST.on:
        A("v_mov_b32 v127, v75")
        ST.vst = 127
    A("s_mul_i32 s29, s2, 43")
    A("s_lshr_b32 s29, s29, 9")
    A("s_mul_i32 s30, s29, 12")
    A("s_sub_u32 s30, s2, s30")
    A("v_and_b32 v4, 7, v3")
    A("v_lshrrev_b32 v5, 3, v3")
    A("v_mul_u32_u24 v5, 12, v5")
    A("s_mul_i32 s31, s30, 96")
    A("v_add_u32 v5, s31, v5")
    A("v_lshlrev_b32 v6, 1, v5")
    A("v_mul_u32_u24 v7, 640, v5")
    A("v_lshl_add_u32 v7, v4, 4, v7")
    A("s_lshl_b32 s31, s29, 7")
    A("s_add_u32 s32, s31, %d" % (6 * 640))
    A("s_waitcnt lgkmcnt(0)")
    ST.now(1)
    srd(A, 36, S_TE, 0, 4608)
    srd(A, 40, S_WE, 0, 737280)
    srd(A, 44, S_WS, EMB_OFF, 30720)
    TR, WE, TE, TT, ACC = 8, 24, 72, 96, 8
    EMBLATE = opt.get("emblate", 0)
    if EMBLATE:
        A("s_barrier")
    for b in range(2):
        A("buffer_load_dwordx4 %s, v6, s[36:39], 0 offen offset:%d" % (v(TR + 8 * b, 4), 2304 * b))
        A("buffer_load_dwordx2 %s, v6, s[36:39], 0 offen offset:%d" % (v(TR + 8 * b + 4, 2), 2304 * b + 16))
    for j in range(12):
        if j == 5:
            A("s_barrier")
        A("buffer_load_dwordx4 %s, v7, s[40:43], %s offen offset:%d" % (v(WE + 4 * j, 4), "s31" if j < 6 else "s32", 640 * (j % 6)))
    if not EMBLATE:
        A("s_barrier")
    A("s_waitcnt vmcnt(12)")
    ST.now(2)
    for j in range(12):
        for b in range(2):
            if j % 2 == 0:
                A("v_lshlrev_b32 %s, 16, %s" % (v(TE + 2 * j + b), v(TR + 8 * b + j // 2)))
            else:
                A("v_and_b32 %s, 0xffff0000, %s" % (v(TE + 2 * j + b), v(TR + 8 * b + j // 2)))
    for k in range(24):
        A("v_mul_f32 %s, %s, %s" % (v(TT + k), f32(-LOG2E), v(TE + k)))
    for k in range(24):
        A("v_exp_f32 %s, %s" % (v(TT + k), v(TT + k)))
    for k in range(24):
        A("v_add_f32 %s, 1.0, %s" % (v(TT + k), v(TT + k)))
    for k in range(24):
        A("v_rcp_f32 %s, %s" % (v(TT + k), v(TT + k)))
    for k in range(24):
        A("v_mul_f32 %s, %s, %s" % (v(TE + k), v(TE + k), v(TT + k)))
    for k in range(16):
        A("v_mov_b32 %s, 0" % v(ACC + k))
    for j in range(12):
        A("s_waitcnt vmcnt(%d)" % (11 - j))
        for d in range(4):
            tt = TT + 2 * (d & 1)
            A("v_lshlrev_b32 %s, 16, %s" % (v(tt), v(WE + 4 * j + d)))
            A("v_and_b32 %s, 0xffff0000, %s" % (v(tt + 1), v(WE + 4 * j + d)))
            for b in range(2):
                A("v_pk_fma_f32 %s, %s, %s, %s op_sel:[0,%d,0] op_sel_hi:[1,%d,1]" % (
                    v(ACC + 8 * b + 2 * d, 2), v(tt, 2), v(TE + 2 * j, 2), v(ACC + 8 * b + 2 * d, 2), b, b))
    for c in range(8):
        A("v_permlane32_swap_b32 %s, %s" % (v(ACC + c), v(ACC + 8 + c)))
    for c in range(8):
        A("v_add_f32 %s, %s, %s" % (v(ACC + c), v(ACC + c), v(ACC + 8 + c)))
    for c in range(4):
        A("v_permlane16_swap_b32 %s, %s" % (v(ACC + c), v(ACC + 4 + c)))
    for c in range(4):
        A("v_add_f32 %s, %s, %s" % (v(ACC + c), v(ACC + c), v(ACC + 4 + c)))
    for c in range(4):
        A("v_add_f32_dpp %s, %s, %s row_ror:8 row_mask:0xf bank_mask:0xf" % (v(ACC + c), v(ACC + c), v(ACC + c)))
    A("v_lshrrev_b32 v6, 5, v3")
    A("v_mul_u32_u24 v6, 1280, v6")
    A("v_bfe_u32 v7, v3, 4, 1")
    A("v_lshl_add_u32 v6, v7, 4, v6")
    A("v_lshl_add_u32 v6, v4, 5, v6")
    A("s_mul_i32 s32, s30, 2560")
    A("s_lshl_b32 s33, s29, 8")
    A("s_add_u32 s32, s32, s33")
    A("s_mov_b32 exec_lo, 0x00ff00ff")
    A("s_mov_b32 exec_hi, 0x00ff00ff")
    A("buffer_store_dwordx4 v[8:11], v6, s[44:47], s32 offen")
    ST.now(3)
    ST.finish(13, 4, 3, 3)
    A.label("L_prep_end")
    A("s_endpgm")
    return header("prep_kernel") + A.finalize() + descriptor("prep_kernel", NV, NV, 100), NMAIN + NEM


RS_A = 2176
RS_C = 1088
OFF_C = 0
OFF_A = 6528
PART_A = 13056
WAVE_LDS = 40960 - 64
XCH = OFF_A
MISC_LDS = 4 * WAVE_LDS
CONV_LDS = 163840


def gen_conv(which, opt):
    name = "conv%d_kernel" % which
    L = "L_c%d_" % which
    A = Asm()
    vm = Counter(A, "vmcnt", 63)
    lg = Counter(A, "lgkmcnt", 15)
    VA = RegAlloc("v", 1, 256)
    SA = RegAlloc("s", 28, 100)
    vLane = VA.alloc()
    vL16 = VA.alloc()
    vL16b = VA.alloc()
    vT = [VA.alloc() for _ in range(8)]
    vAb = [[VA.alloc() for j in range(3)] for r in range(4)]
    vBb = [[VA.alloc() for j in range(3)] for r in range(4)]
    vO = VA.alloc(40, 4)
    vPool = VA.alloc(80, 4)
    vWv = [vPool + 20 * i for i in range(4)]
    PA, PB = vPool, vPool + 40
    vFr = VA.alloc(32, 4)
    vX = VA.alloc(40, 4)
    vH = vX
    vY = VA.alloc(16, 4)
    sW = SA.alloc()
    sB, sG, sTY, sTX = [SA.alloc() for _ in range(4)]
    sT = [SA.alloc() for _ in range(8)]
    sOff = [SA.alloc() for _ in range(6)]
    sMa = [SA.alloc() for _ in range(6)]
    sR = [SA.alloc() for _ in range(4)]
    sWoff = SA.alloc()
    sWB = SA.alloc()
    sACT = SA.alloc(4, 4)
    sWP = SA.alloc(4, 4)
    sE1 = SA.alloc(4, 4)
    sE2 = SA.alloc(4, 4)
    sE3 = SA.alloc(4, 4)
    sE4 = SA.alloc(4, 4)
    sE5 = SA.alloc(4, 4)
    STAMP = opt.get("stamp", 0)
    sSt = SA.alloc(2, 2)
    vSt = VA.alloc()
    ST = Stamper(A, STAMP, vSt, which - 1, sst=sSt, ssrd=sE1, lg=lg)
    t0, t1, t2, t3, t4, t5, t6, t7 = vT

    def acc(r, h, t):
        i = (h * 5 + t) * 4
        if r == 3:
            return v(vO + i, 4)
        return a(r * 40 + i, 4)

    wset = [0, 1, 2, 3, 4, 5, 6, 7, 8, 9, 0, 1, 2, 3, 9, 0, 1, 2, 4, 5, 6, 7, 8]

    def wreg(n, t):
        k = wset[n]
        if k < 4:
            return v(vWv[k] + 4 * t, 4)
        return a(120 + 20 * (k - 4) + 4 * t, 4)

    steps = []
    for c in range(2):
        for (i, j) in TAPS:
            steps.append(("A", c, i, j))
    for k, (ta, tb, dk) in enumerate(PAIRS):
        steps.append(("B", ta, tb, dk))
    RM = opt.get("rm", 1)
    ops = [(n, 2 * r + h) for r in range(4) for n in range(RM) for h in range(2)]
    ops += [(n, m) for n in range(RM, 18) for m in range(8)]
    T0 = len(ops)
    for r in range(4):
        for h in range(2):
            for n in range(18, 23):
                ops.append((n, 2 * r + h))
    NOPS = len(ops)
    first_use, last_use = {}, {}
    for i, (n, m) in enumerate(ops):
        first_use.setdefault(n, i)
        last_use[n] = i

    def frag_deps(i):
        n, m = ops[i]
        st = steps[n]
        r, h = m >> 1, m & 1
        if st[0] == "A":
            _, c, ti, j = st
            rows = [r] if ti == 0 else list(range(5 if ti == 1 else 6))
            halves = [h] if j == 1 else [0, 1]
            d = [("D", c, k, hh) for k in rows for hh in halves]
            if j != 1:
                d.append(("H", c))
            return d
        return [("D", 2, k, 0) for k in range(6)] + [("H", 2)]

    A("s_cmp_ge_u32 s2, 256")
    A("s_cbranch_scc1 %send" % L)
    ST.start()
    A("s_load_dwordx2 s[26:27], s[0:1], 88")
    A("v_lshrrev_b32 %s, 6, v0" % v(t0))
    A("v_and_b32 %s, 63, v0" % v(vLane))
    A("v_readfirstlane_b32 %s, %s" % (s(sW), v(t0)))
    mp = opt.get("map", 2)
    A("s_and_b32 %s, s2, 7" % s(sT[0]))
    A("s_lshr_b32 %s, s2, 3" % s(sT[1]))
    A("s_lshl_b32 %s, %s, 2" % (s(sT[7]), s(sT[1])))
    A("s_add_u32 %s, %s, %s" % (s(sT[7]), s(sT[7]), s(sW)))
    if mp == 2:
        A("s_lshr_b32 %s, %s, 2" % (s(sB), s(sT[0])))
        A("s_and_b32 %s, %s, 1" % (s(sG), s(sT[0])))
        A("s_lshl_b32 %s, %s, 1" % (s(sG), s(sG)))
        A("s_and_b32 %s, %s, 1" % (s(sT[2]), s(sT[1])))
        A("s_add_u32 %s, %s, %s" % (s(sG), s(sG), s(sT[2])))
        A("s_bfe_u32 %s, %s, 0x10001" % (s(sTX), s(sT[1])))
        A("s_bfe_u32 %s, %s, 0x10001" % (s(sTY), s(sT[0])))
        A("s_lshl_b32 %s, %s, 3" % (s(sTY), s(sTY)))
        A("s_lshr_b32 %s, %s, 2" % (s(sT[2]), s(sT[1])))
        A("s_add_u32 %s, %s, %s" % (s(sTY), s(sTY), s(sT[2])))
    elif mp == 1:
        A("s_lshr_b32 %s, %s, 2" % (s(sB), s(sT[0])))
        A("s_and_b32 %s, %s, 3" % (s(sG), s(sT[0])))
        A("s_and_b32 %s, %s, 1" % (s(sTX), s(sT[1])))
        A("s_lshr_b32 %s, %s, 1" % (s(sTY), s(sT[1])))
    elif mp == 4:
        A("s_lshr_b32 %s, %s, 2" % (s(sB), s(sT[0])))
        A("s_and_b32 %s, %s, 3" % (s(sG), s(sT[1])))
        A("s_bfe_u32 %s, %s, 0x10002" % (s(sTX), s(sT[1])))
        A("s_and_b32 %s, %s, 3" % (s(sTY), s(sT[0])))
        A("s_lshl_b32 %s, %s, 2" % (s(sTY), s(sTY)))
        A("s_lshr_b32 %s, %s, 3" % (s(sT[2]), s(sT[1])))
        A("s_add_u32 %s, %s, %s" % (s(sTY), s(sTY), s(sT[2])))
    A("s_lshl_b32 %s, %s, 2" % (s(sTY), s(sTY)))
    A("s_lshl_b32 %s, %s, 5" % (s(sTX), s(sTX)))
    A("s_mul_i32 %s, %s, %d" % (s(sWB), s(sW), WAVE_LDS))
    A("v_lshlrev_b32 %s, 4, %s" % (v(vL16), v(vLane)))
    A("v_add_u32 %s, 4096, %s" % (v(vL16b), v(vL16)))
    A("s_lshl_b32 %s, %s, 2" % (s(sT[0]), s(sB)))
    A("s_add_u32 %s, %s, %s" % (s(sT[0]), s(sT[0]), s(sW)))
    A("s_mul_i32 %s, %s, %d" % (s(sT[0]), s(sT[0]), SLICE))
    if which == 2:
        A("s_add_u32 %s, %s, %d" % (s(sT[0]), s(sT[0]), A2_OFF))
    A("s_lshl_b32 %s, %s, 2" % (s(sT[1]), s(sG)))
    A("s_add_u32 %s, %s, %s" % (s(sT[1]), s(sT[1]), s(sW)))
    A("s_mul_i32 %s, %s, %d" % (s(sT[1]), s(sT[1]), WSTREAM))
    A("s_add_u32 %s, %s, %d" % (s(sT[1]), s(sT[1]), WP1_OFF if which == 1 else WP2_OFF))

    def row_table(k):
        r = sT[3]
        o = []
        if k < 4:
            o.append("s_add_u32 %s, %s, %d" % (s(sR[k]), s(sW), 1 + k))
            o.append("s_and_b32 %s, %s, 3" % (s(sR[k]), s(sR[k])))
            o.append("s_mul_i32 %s, %s, %d" % (s(sMa[k]), s(sR[k]), RS_A))
            o.append("s_add_u32 %s, %s, %s" % (s(sMa[k]), s(sMa[k]), s(sWB)))
            o.append("s_add_u32 %s, %s, %d" % (s(sMa[k]), s(sMa[k]), OFF_A + 64))
            o.append("s_add_u32 %s, %s, %s" % (s(r), s(sR[k]), s(sTY)))
            o.append("s_sub_u32 %s, %s, 1" % (s(r), s(r)))
        else:
            o.append("s_add_u32 %s, %s, %d" % (s(sMa[k]), s(sWB), k * RS_A + OFF_A + 64))
            o.append("s_add_u32 %s, %s, %d" % (s(r), s(sTY), k - 1))
        o.append("s_lshl_b32 %s, %s, 6" % (s(sOff[k]), s(r)))
        o.append("s_add_u32 %s, %s, %s" % (s(sOff[k]), s(sOff[k]), s(sTX)))
        o.append("s_lshl_b32 %s, %s, 6" % (s(sOff[k]), s(sOff[k])))
        o.append("s_cmp_lt_u32 %s, 64\ns_cselect_b32 %s, %s, 0x%x" % (s(r), s(sOff[k]), s(sOff[k]), HUGE))
        return o

    for k in range(2):
        for x in row_table(k):
            A(x)
    A("s_waitcnt lgkmcnt(0)")
    ST.now(1)
    srd(A, sACT, S_WS, s(sT[0]), SLICE)
    srd(A, sWP, S_WS, s(sT[1]), WSTREAM)

    rho, sgv, x1, x2 = t4, t5, t6, t7
    sc = vY
    setup = []

    def V(txt, mark=None):
        setup.append((mark, txt))
    for x in row_table(2):
        V(x)
    V("s_nop 0", "row2")
    for x in row_table(3):
        V(x)
    V("s_nop 0", "row3")
    V("v_lshrrev_b32 %s, 3, %s" % (v(t4), v(vLane)))
    V("v_bfe_u32 %s, %s, 2, 1" % (v(t5), v(vLane)))
    V("v_and_b32 %s, 3, %s" % (v(t6), v(vLane)))
    V("v_mul_u32_u24 %s, 33, %s" % (v(t7), v(t5)))
    V("v_mul_u32_u24 %s, %d, %s" % (v(t2), RS_A, v(t4)))
    V("v_lshl_add_u32 %s, %s, 6, %s" % (v(t2), v(t7), v(t2)))
    V("v_lshl_add_u32 %s, %s, 4, %s" % (v(t2), v(t6), v(t2)))
    V("v_add_u32 %s, %s, %s" % (v(t2), s(sWB), v(t2)))
    V("v_mul_u32_u24 %s, %d, %s" % (v(t3), RS_C, v(t4)))
    V("v_lshl_add_u32 %s, %s, 5, %s" % (v(t3), v(t7), v(t3)))
    V("v_lshl_add_u32 %s, %s, 4, %s" % (v(t3), v(t6), v(t3)))
    V("v_add_u32 %s, %s, %s" % (v(t3), s(sWB), v(t3)))
    V("v_add_u32 %s, %s, %s" % (v(t4), s(sTY), v(t4)))
    V("v_subrev_u32 %s, 1, %s" % (v(t4), v(t4)))
    V("v_add_u32 %s, %s, %s" % (v(t7), s(sTX), v(t7)))
    V("v_subrev_u32 %s, 1, %s" % (v(t7), v(t7)))
    V("v_max_u32 %s, %s, %s" % (v(t5), v(t4), v(t7)))
    V("v_lshl_add_u32 %s, %s, 6, %s" % (v(t4), v(t4), v(t7)))
    V("v_lshlrev_b32 %s, 4, %s" % (v(t6), v(t6)))
    V("v_lshl_add_u32 %s, %s, 6, %s" % (v(t0), v(t4), v(t6)))
    V("v_lshl_add_u32 %s, %s, 5, %s" % (v(t1), v(t4), v(t6)))
    V("v_cmp_gt_u32 vcc, 64, %s" % v(t5))
    V("v_mov_b32 %s, 0x%x" % (v(t4), HUGE))
    V("s_mov_b32 %s, %d" % (s(sT[4]), P1))
    V("s_mov_b32 %s, %d" % (s(sT[5]), P2))
    V("v_cndmask_b32 %s, %s, %s, vcc" % (v(t0), v(t4), v(t0)))
    V("v_cndmask_b32 %s, %s, %s, vcc" % (v(t1), v(t4), v(t1)), "halo")
    V("v_and_b32 %s, 15, %s" % (v(rho), v(vLane)))
    V("v_lshrrev_b32 %s, 4, %s" % (v(sgv), v(vLane)))
    for j in (1, 0, 2):
        V("v_add_u32 %s, %d, %s" % (v(x1), j - 1, v(rho)))
        V("v_bfe_u32 %s, %s, 2, 1" % (v(x2), v(x1)))
        V("v_lshlrev_b32 %s, 1, %s" % (v(x2), v(x2)))
        V("v_xor_b32 %s, %s, %s" % (v(x2), v(x2), v(sgv)))
        V("v_lshlrev_b32 %s, 4, %s" % (v(x2), v(x2)))
        V("v_lshl_add_u32 %s, %s, 6, %s" % (v(sc + j), v(x1), v(x2)))
        for r in range(4):
            V("v_add_u32 %s, %s, %s" % (v(vAb[r][j]), s(sMa[r]), v(sc + j)))
    V("v_and_b32 %s, 1, %s" % (v(x1), v(sgv)))
    V("v_lshlrev_b32 %s, 4, %s" % (v(x1), v(x1)))
    V("v_lshl_add_u32 %s, %s, 5, %s" % (v(x1), v(rho), v(x1)))
    V("v_add_u32 %s, %s, %s" % (v(sc + 4), s(sWB), v(x1)))
    V("v_lshrrev_b32 %s, 1, %s" % (v(sc + 5), v(sgv)))
    V("v_mul_u32_u24 %s, %d, %s" % (v(sc + 3), RS_C, v(sc + 5)))
    for r in range(4):
        V("s_mul_i32 %s, %s, %d" % (s(sT[6]), s(sR[r]), RS_C))
        V("v_add_u32 %s, %s, %s" % (v(vBb[r][2]), s(sT[6]), v(sc + 4)))
        V("v_lshl_add_u32 %s, %s, 5, %s" % (v(vBb[r][0]), v(sc + 5), v(vBb[r][2])))
        V("v_add_u32 %s, %s, %s" % (v(vBb[r][1]), v(sc + 3), v(vBb[r][2])))
    for x in row_table(4):
        V(x)
    V("s_nop 0", "row4")
    for x in row_table(5):
        V(x)
    V("s_nop 0", "row5")
    ready = {"row0", "row1"}

    def fill(n):
        for _ in range(n):
            if not setup:
                return
            mk, txt = setup.pop(0)
            if txt != "s_nop 0":
                A(txt)
            if mk:
                ready.add(mk)

    def require(mk):
        while mk not in ready:
            fill(1)

    FD = 7
    need_at = {}
    for i in range(NOPS):
        for d in frag_deps(i):
            need_at.setdefault(d, max(i - FD, min(i, (i + 1) // 2 - 1)))
    items = []
    state = {"woff": None, "dma": None}

    def add(tag, need, emit, minop=-1, lat=None):
        items.append(dict(tag=tag, need=need, emit=emit, minop=minop, lat=lat))

    prev_user = {}
    for n in range(NSTEP):
        k = wset[n]
        minop = last_use[prev_user[k]] + 1 if k in prev_user else -1
        prev_user[k] = n
        for t in range(5):
            def f(t=t, n=n):
                if state["woff"] != n:
                    A("s_mov_b32 %s, %d" % (s(sWoff), n * 5120))
                    state["woff"] = n
                if t < 4:
                    A("buffer_load_dwordx4 %s, %s, %s, %s offen offset:%d" % (
                        wreg(n, t), v(vL16), s(sWP, 4), s(sWoff), t * 1024))
                else:
                    A("buffer_load_dwordx4 %s, %s, %s, %s offen" % (wreg(n, t), v(vL16b), s(sWP, 4), s(sWoff)))
            add(("W", n, t), first_use[n] + 0.01 * t, f, minop)
    for p in range(2):
        for k in range(6):
            for hh in range(2):
                def f(p=p, k=k, hh=hh):
                    require("row%d" % k)
                    if state["dma"] != (p, k):
                        A("s_add_u32 m0, %s, %d" % (s(sMa[k]), p * PART_A))
                        A("s_add_u32 %s, %s, %d" % (s(sT[2]), s(sOff[k]), p * P1))
                        state["dma"] = (p, k)
                    A("buffer_load_dwordx4 %s, %s, %s offen%s lds" % (v(vL16), s(sACT, 4), s(sT[2]), " offset:1024" if hh else ""))
                add(("D", p, k, hh), need_at[("D", p, k, hh)] - 0.5, f)
    for k in range(6):
        def f(k=k):
            require("row%d" % k)
            A("s_sub_u32 %s, %s, %s" % (s(sT[2]), s(sMa[k]), s(sWB)))
            A("s_lshr_b32 %s, %s, 1" % (s(sT[2]), s(sT[2])))
            A("s_add_u32 %s, %s, %s" % (s(sT[2]), s(sT[2]), s(sWB)))
            A("s_sub_u32 m0, %s, %d" % (s(sT[2]), (OFF_A + 64) // 2 - OFF_C - 32))
            A("s_lshr_b32 %s, %s, 1" % (s(sT[2]), s(sOff[k])))
            A("s_add_u32 %s, %s, %d" % (s(sT[2]), s(sT[2]), P2))
            A("buffer_load_dwordx4 %s, %s, %s offen lds" % (v(vL16), s(sACT, 4), s(sT[2])))
            state["dma"] = None
        add(("D", 2, k, 0), need_at[("D", 2, k, 0)] - 30, f)
    for c in range(3):
        def f(c=c):
            require("halo")
            A("buffer_load_dwordx4 %s, %s, %s, %s offen" % (
                v(vH + 4 * c, 4), v(t1 if c == 2 else t0), s(sACT, 4), "0" if c == 0 else s(sT[3 + c])))
        add(("HL", c), (need_at[("H", 0)] - 0.6) if c == 0 else 30 + c, f)

    sched = {}

    def at(op, fs, pred=None):
        sched.setdefault(op, []).extend((f, pred) for f in fs)

    def two(a_, b_=None):
        def f():
            A(a_)
            if b_:
                A(b_)
        return f

    def srd2(d, base, off, nrec):
        B = Asm()
        srd(B, d, base, off, nrec)
        tx = [i.text for i in B.ins]
        return [two(tx[0], tx[1]), two(tx[2], tx[3])]

    hw = set()

    def write_halo(c):
        if c in hw:
            return
        vneed(("HL", c))
        if c < 2:
            A("s_mov_b32 exec_hi, 0x0000ffff")
            A("ds_write_b128 %s, %s offset:%d" % (v(t2), v(vH + 4 * c, 4), OFF_A + c * PART_A))
            A("s_mov_b32 exec_hi, -1")
        else:
            A("s_mov_b32 exec_lo, 0x33333333")
            A("s_mov_b32 exec_hi, 0x00003333")
            A("ds_write_b128 %s, %s offset:%d" % (v(t3), v(vH + 8, 4), OFF_C))
            A("s_mov_b64 exec, -1")
        lg.issue("hw")
        hw.add(c)
    at(44, [lambda: write_halo(1), lambda: write_halo(2)])

    def kernarg_load():
        A("s_load_dwordx16 s[4:19], s[0:1], 0")
        A("s_load_dwordx4 s[20:23], s[0:1], 64")

    def pf():
        code_prefetch(A, sE5, sT[7], sE5 + 2, L + "p", 127, L + "end")

    def kernarg_wait():
        A("s_waitcnt lgkmcnt(0)")
        lg.reset_after_wait0()
    at(20, [kernarg_load])
    at(34, [kernarg_wait])
    SP = 48
    SLD = opt.get("sld", 90)
    SAD = opt.get("sad", 128)
    own_idle = lambda i: i >= T0 or ops[i][1] in (1, 2, 3, 4)
    if which == 1:
        fs = [two("v_lshrrev_b32 %s, 4, %s" % (v(t1), v(vLane)), "v_and_b32 %s, 15, %s" % (v(t0), v(vLane))),
              two("v_mul_u32_u24 %s, 2560, %s" % (v(t0), v(t0)), "v_lshl_add_u32 %s, %s, 4, %s" % (v(t4), v(t1), v(t0))),
              two("v_lshl_add_u32 %s, %s, 5, %s" % (v(t0), v(t1), v(t0)), "v_lshlrev_b32 %s, 3, %s" % (v(t5), v(t1))),
              two("v_lshlrev_b32 %s, 4, %s" % (v(t1), v(t1))),
              two("s_mul_i32 %s, %s, 1280" % (s(sT[4]), s(sB)), "s_mul_i32 %s, %s, 320" % (s(sT[5]), s(sG))),
              two("s_add_u32 %s, %s, %s" % (s(sT[4]), s(sT[4]), s(sT[5])), "s_mul_i32 %s, %s, 160" % (s(sT[5]), s(sG)))]
        fs += srd2(sE1, S_WS, EMB_OFF, 30720) + srd2(sE2, S_G2, 0, 640) + srd2(sE3, S_B2, 0, 640)
        at(SP, fs)
        offs = [(t0, 0), (t0, 16), (t0, 128), (t0, 144), (t4, 256)]
        for t in range(5):
            def f(t=t):
                A("buffer_load_dwordx4 %s, %s, %s, %s offen offset:%d" % (
                    v(vX + 4 * t, 4), v(offs[t][0]), s(sE1, 4), s(sT[4]), offs[t][1]))
            add(("E", t), SLD + 20, f, SLD, opt.get("elat", 1000))
        cnt = 0
        for e, sr in enumerate((sE2, sE3)):
            base = vX + 20 + 10 * e
            for (o, w, vo, nm) in ((0, 4, t1, 0), (4, 4, t1, 64), (8, 2, t5, 128)):
                def f(base=base, sr=sr, o=o, w=w, vo=vo, nm=nm):
                    A("buffer_load_dwordx%d %s, %s, %s, %s offen offset:%d" % (
                        w, v(base + o, w), v(vo), s(sr, 4), s(sT[5]), nm))
                add(("G", cnt), NOPS + cnt, f, opt.get("gld", 130), opt.get("elat", 1000))
                cnt += 1
        fs = [lambda: vneed([("E", t) for t in range(5)])]
        for mod in DPP_STEPS:
            for k in range(0, 20, 2):
                fs.append(two(*["v_add_f32_dpp %s, %s, %s %s row_mask:0xf bank_mask:0xf" % (v(vX + kk), v(vX + kk), v(vX + kk), mod)
                                for kk in (k, k + 1)]))
        at(SAD - 20, fs)
        fs = []
        for k in range(0, 40, 2):
            fs.append(two(*["v_add_f32 %s, %s, %s" % (v(vO + kk), v(vO + kk), v(vX + kk % 20)) for kk in (k, k + 1)]))
        at(SAD, fs, own_idle)
    else:
        fs = [two("v_and_b32 %s, 15, %s" % (v(t0), v(vLane)), "v_lshlrev_b32 %s, 13, %s" % (v(t0), v(t0))),
              two("v_bfe_u32 %s, %s, 4, 1" % (v(t1), v(vLane)), "v_lshl_add_u32 %s, %s, 5, %s" % (v(t0), v(t1), v(t0))),
              two("v_lshrrev_b32 %s, 5, %s" % (v(t1), v(vLane)), "v_lshl_add_u32 %s, %s, 4, %s" % (v(t0), v(t1), v(t0))),
              two("s_lshl_b32 %s, %s, 2" % (s(sT[4]), s(sB)), "s_add_u32 %s, %s, %s" % (s(sT[4]), s(sT[4]), s(sG))),
              two("s_mul_i32 %s, %s, %d" % (s(sT[4]), s(sT[4]), SLICE), "s_add_u32 %s, %s, %s" % (s(sT[5]), s(sTY), s(sW))),
              two("s_lshl_b32 %s, %s, 6" % (s(sT[5]), s(sT[5])), "s_add_u32 %s, %s, %s" % (s(sT[5]), s(sT[5]), s(sTX))),
              two("s_lshl_b32 %s, %s, 1" % (s(sT[5]), s(sT[5])), "s_add_u32 %s, %s, %s" % (s(sT[4]), s(sT[4]), s(sT[5])))]
        fs += srd2(sE1, S_X, 0, 5242880) + srd2(sE2, S_OUT, 0, 5242880)
        at(SP, fs)
        for t in range(5):
            def f(t=t):
                A("s_add_u32 %s, %s, %d" % (s(sT[5]), s(sT[4]), t * 131072))
                A("buffer_load_dwordx4 %s, %s, %s, %s offen" % (v(vX + 4 * t, 4), v(t0), s(sE1, 4), s(sT[5])))
            add(("E", t), SLD + 20, f, SLD, opt.get("elat", 1000))
        fs = [lambda: vneed([("E", t) for t in range(5)])]
        for t in range(5):
            fs.append(two("v_permlane16_swap_b32 %s, %s" % (v(vX + 4 * t), v(vX + 4 * t + 2)),
                          "v_permlane16_swap_b32 %s, %s" % (v(vX + 4 * t + 1), v(vX + 4 * t + 3))))
        at(SAD - 4, fs)
        fs = []
        for i in range(10):
            for k in range(2):
                sx = vX + 4 * (i % 5) + 2 * (i // 5) + k
                u = vY + 6 + 2 * k
                fs.append(two("v_lshlrev_b32 %s, 16, %s" % (v(u), v(sx)), "v_and_b32 %s, 0xffff0000, %s" % (v(u + 1), v(sx))))
                o = vO + 4 * i + 2 * k
                fs.append(two("v_add_f32 %s, %s, %s" % (v(o), v(o), v(u)), "v_add_f32 %s, %s, %s" % (v(o + 1), v(o + 1), v(u + 1))))
        at(SAD, fs, own_idle)

    xw, y1, y2, y3 = vY, vY + 1, vY + 2, vY + 3
    yb = [y1, y2, y3]
    fs = [two("v_add_u32 %s, %s, %s" % (v(xw), s(sWB), v(vL16)))]
    for d in (1, 2, 3):
        fs.append(two("s_sub_u32 %s, %s, %d" % (s(sT[6]), s(sW), d), "s_and_b32 %s, %s, 3" % (s(sT[6]), s(sT[6]))))
        fs.append(two("s_mul_i32 %s, %s, %d" % (s(sT[6]), s(sT[6]), WAVE_LDS),
                      "v_add_u32 %s, %s, %s" % (v(yb[d - 1]), s(sT[6]), v(vL16))))
    at(40, fs)
    slot = {}

    def put(op, gap, f):
        slot.setdefault((op, gap), []).append(f)

    for hg in range(6):
        r, h = hg >> 1, hg & 1
        for t in range(5):
            XWM = opt.get("xw", 1)
            if XWM == 2:
                for half in range(2):
                    def f(r=r, h=h, t=t, hg=hg, half=half):
                        A("ds_write_b64 %s, %s offset:%d" % (v(xw), a(r * 40 + (h * 5 + t) * 4 + 2 * half, 2),
                                                             XCH + r * 10240 + (h * 5 + t) * 1024 + 8 * half))
                        lg.issue(("XW", hg))
                    put(T0 + 5 * (hg + 1) + t, 1 - half, f) if False else put(T0 + 5 * (hg + 1) + t, (1, 4)[half] if opt.get("xw4", 0) else (0, 1)[half], f)
                continue

            def f(r=r, h=h, t=t, hg=hg):
                if XWM:
                    A("ds_write_b128 %s, %s offset:%d" % (v(xw), acc(r, h, t), XCH + r * 10240 + (h * 5 + t) * 1024))
                else:
                    A("ds_write_b32 %s, %s offset:%d" % (v(xw), v(xw), XCH + r * 10240 + (h * 5 + t) * 1024))
                lg.issue(("XW", hg))
            put(T0 + 5 * (hg + 1) + t, 1, f)

    def barrier(tags):
        def f():
            lg.need(tags)
            if opt.get("xb", 1):
                A("s_barrier")
        return f

    def xread(d, i, dst):
        def f():
            A("ds_read_b128 %s, %s offset:%d" % (v(dst + 4 * i, 4), v(yb[d]), XCH + d * 10240 + i * 1024))
            lg.issue(("R", d, i))
        return f

    PK = opt.get("pk", 0)

    def add2(src_, k, tag=None):
        def f():
            if tag is not None:
                lg.need(tag)
            if not opt.get("xa", 1):
                pass
            elif PK:
                A("v_pk_add_f32 %s, %s, %s" % (v(vO + k, 2), v(vO + k, 2), v(src_ + k, 2)))
            else:
                for kk in (k, k + 1):
                    A("v_add_f32 %s, %s, %s" % (v(vO + kk), v(vO + kk), v(src_ + kk)))
        return f

    for d in range(3):
        Bd = T0 + 15 + 10 * d
        pool = PA if d % 2 == 0 else PB
        put(Bd, 2, barrier([("XW", 2 * d + 1)]))
        if d < 2:
            rs = [(Bd, 3), (Bd, 4), (Bd + 1, 2), (Bd + 1, 3), (Bd + 1, 4),
                  (Bd + 5, 2), (Bd + 5, 3), (Bd + 5, 4), (Bd + 6, 2), (Bd + 6, 4)]
            asl = [(Bd + 2, 2), (Bd + 2, 3), (Bd + 2, 4), (Bd + 3, 1), (Bd + 3, 2), (Bd + 3, 3), (Bd + 3, 4),
                   (Bd + 4, 1), (Bd + 4, 2), (Bd + 4, 3),
                   (Bd + 7, 2), (Bd + 7, 3), (Bd + 7, 4), (Bd + 8, 1), (Bd + 8, 2), (Bd + 8, 3), (Bd + 8, 4),
                   (Bd + 9, 1), (Bd + 9, 2), (Bd + 9, 3)]
        else:
            rs = [(Bd, 3), (Bd, 4)] + [(Bd + 1 + k // 4, (0, 1, 2, 4)[k % 4]) for k in range(8)]
            asl = [(Bd + 2, 3)] + [(o, g) for o in (Bd + 3, Bd + 4) for g in range(5)]
        for i, (o, g) in enumerate(rs):
            put(o, g, xread(d, i, pool))
        na = 20 if d < 2 else 10
        assert len(asl) >= na, (d, len(asl))
        for k in range(na):
            i = k // 2
            tag = {0: 1, 4: 4, 10: 6, 14: 9}.get(k)
            tag = None if tag is None else ("R", d, tag)
            put(asl[k][0], asl[k][1], add2(pool, 2 * k, tag))

    LAT, RATE, LIM = opt.get("lat", 700), opt.get("rate", 88), opt.get("lim", 10)
    M = {"t": 600.0}
    issued = []
    arr = {}
    pend = sorted(items, key=lambda it: it["need"])

    def pick(cur):
        for it in pend:
            if it["minop"] <= cur:
                return it
        return None

    def issue(it):
        k = len(issued)
        if k >= LIM:
            M["t"] = max(M["t"], issued[k - LIM])
        it["emit"]()
        vm.issue(it["tag"])
        a_ = max(M["t"] + (it["lat"] or LAT), (issued[-1] + RATE) if issued else 0)
        issued.append(a_)
        arr[it["tag"]] = (a_, k)
        pend.remove(it)
        M["t"] += 8
        if k == 1 and opt.get("cpf", 1):
            pf()

    cur = {"op": -1}

    def vneed(tags):
        if not isinstance(tags, list):
            tags = [tags]
        for tg in tags:
            while tg not in arr:
                it = pick(cur["op"])
                assert it is not None, tg
                issue(it)
                fill(6)
        ta, kk = max(arr[tg] for tg in tags)
        if ta > M["t"]:
            while len(issued) < kk + LIM + 1:
                it = pick(cur["op"])
                if it is None:
                    break
                issue(it)
                fill(6)
        M["t"] = max(M["t"], ta)
        vm.need(tags)

    def try_issue():
        it = pick(cur["op"])
        if it is None:
            return False
        k = len(issued)
        if k >= LIM and issued[k - LIM] > M["t"]:
            return False
        issue(it)
        return True

    def frag_read(i):
        n, m = ops[i]
        st = steps[n]
        r, h = m >> 1, m & 1
        dst = v(vFr + 4 * (i % 8), 4)
        deps = frag_deps(i)
        vneed([d for d in deps if d[0] == "D"])
        for d in deps:
            if d[0] == "H":
                write_halo(d[1])
        fill(1000)
        if st[0] == "A":
            _, c, ti, j = st
            A("ds_read_b128 %s, %s offset:%d" % (dst, v(vAb[r][j]), c * PART_A + ti * RS_A + h * 1024))
        else:
            _, ta, tb, dk = st
            A("ds_read_b128 %s, %s offset:%d" % (dst, v(vBb[r][dk]), ta[0] * RS_C + ta[1] * 32 + h * 512))
        lg.issue(("F", i))

    def frag_ready(i):
        for d in frag_deps(i):
            tg = ("HL", d[1]) if d[0] == "H" else d
            if tg not in arr or arr[tg][0] > M["t"]:
                return False
        return True

    queue = []

    def pop_queue(i):
        for qi, (f, pred) in enumerate(queue):
            if pred is None or pred(i):
                queue.pop(qi)
                f()
                return True
            break
        return False

    nr = 0
    first = True
    for i, (n, m) in enumerate(ops):
        cur["op"] = i
        r, h = m >> 1, m & 1
        queue += sched.pop(i, [])
        while nr <= i:
            frag_read(nr)
            nr += 1
            M["t"] += 100 if nr == i + 1 else 0
        if first:
            ST.now(2)
        lg.need(("F", i))
        for t in range(5):
            vneed(("W", n, t))
            if first:
                ST.now(3)
                first = False
            wv = wreg(n, t)
            fv = v(vFr + 4 * (i % 8), 4)
            c = "0" if n == 0 else acc(r, h, t)
            if which == 1:
                A("v_mfma_f32_16x16x32_bf16 %s, %s, %s, %s" % (acc(r, h, t), wv, fv, c))
            else:
                A("v_mfma_f32_16x16x32_bf16 %s, %s, %s, %s" % (acc(r, h, t), fv, wv, c))
            M["t"] += 16
            sl = slot.pop((i, t), [])
            if sl:
                if t == 3 and i + 1 < NOPS and nr > i + 1:
                    lg.need(("F", i + 1))
                if t == 0 and nr < NOPS and nr <= i + FD:
                    frag_read(nr)
                    nr += 1
                for f in sl:
                    f()
            elif t in (0, 2) and nr < NOPS and nr <= i + FD and (t == 0 or nr < i + FD) and (frag_ready(nr) or nr <= i + 1):
                frag_read(nr)
                nr += 1
            elif t == 3:
                if i + 1 < NOPS and nr > i + 1:
                    lg.need(("F", i + 1))
                    n2 = ops[i + 1][0]
                    if all(("W", n2, tt) in arr and arr[("W", n2, tt)][0] <= M["t"] for tt in range(5)):
                        vm.need([("W", n2, tt) for tt in range(5)])
                if i >= T0:
                    pop_queue(i)
            elif t in (1, 4):
                if not try_issue():
                    pop_queue(i)
            else:
                pop_queue(i)
        if STAMP >= 2 and i % 8 == 7 and i // 8 < 22:
            ST.now(4 + i // 8)
    assert not sched, sched.keys()
    assert not slot, slot.keys()
    assert not pend, [x["tag"] for x in pend]
    if opt.get("verbose"):
        print("conv%d model end of MFMA: %d, leftover queue %d" % (which, M["t"], len(queue)))
    ST.now(26)
    while queue:
        f, _ = queue.pop(0)
        f()
    ST.now(27)
    for i in range(5, 10):
        lg.need(("R", 2, i))
        for k in (0, 2):
            A("v_pk_add_f32 %s, %s, %s" % (v(vO + 4 * i + k, 2), v(vO + 4 * i + k, 2), v(PA + 4 * i + k, 2)))
    ST.now(28)
    P = vPool
    if which == 2:
        for t in range(5):
            for h in range(2):
                for k in range(2):
                    o = vO + 20 * h + 4 * t + 2 * k
                    A("v_cvt_pk_bf16_f32 %s, %s, %s" % (v(P + 4 * t + 2 * h + k), v(o), v(o + 1)))
        for t in range(5):
            for k in range(2):
                A("v_permlane16_swap_b32 %s, %s" % (v(P + 4 * t + k), v(P + 4 * t + 2 + k)))
        for t in range(5):
            A("s_add_u32 %s, %s, %d" % (s(sT[5]), s(sT[4]), t * 131072))
            A("buffer_store_dwordx4 %s, %s, %s, %s offen%s" % (v(P + 4 * t, 4), v(t0), s(sE2, 4), s(sT[5]), opt.get("out_flags", "")))
    else:
        sC = sT[6]
        A("v_readfirstlane_b32 %s, %s" % (s(sC), v(vO)))
        NC = P
        A("v_sub_f32 %s, 0, %s" % (v(NC), s(sC)))
        A("v_sub_f32 %s, 0, %s" % (v(NC + 1), s(sC)))
        for k in range(0, 40, 2):
            A("v_pk_add_f32 %s, %s, %s" % (v(vO + k, 2), v(vO + k, 2), v(NC, 2)))
        S1, S2 = P + 2, P + 6
        A("v_pk_add_f32 %s, %s, %s" % (v(S1, 2), v(vO, 2), v(vO + 4, 2)))
        A("v_pk_add_f32 %s, %s, %s" % (v(S1 + 2, 2), v(vO + 2, 2), v(vO + 6, 2)))
        A("v_pk_mul_f32 %s, %s, %s" % (v(S2, 2), v(vO, 2), v(vO, 2)))
        A("v_pk_mul_f32 %s, %s, %s" % (v(S2 + 2, 2), v(vO + 2, 2), v(vO + 2, 2)))
        for k in range(4, 40, 2):
            e = k & 2
            if k >= 8:
                A("v_pk_add_f32 %s, %s, %s" % (v(S1 + e, 2), v(S1 + e, 2), v(vO + k, 2)))
            A("v_pk_fma_f32 %s, %s, %s, %s" % (v(S2 + e, 2), v(vO + k, 2), v(vO + k, 2), v(S2 + e, 2)))
        A("v_pk_add_f32 %s, %s, %s" % (v(S1, 2), v(S1, 2), v(S1 + 2, 2)))
        A("v_pk_add_f32 %s, %s, %s" % (v(S2, 2), v(S2, 2), v(S2 + 2, 2)))
        A("v_add_f32 %s, %s, %s" % (v(S1), v(S1), v(S1 + 1)))
        A("v_add_f32 %s, %s, %s" % (v(S1 + 1), v(S2), v(S2 + 1)))
        wave_sum(A, [S1, S1 + 1], [S2, S2 + 1])
        M = P + 10
        A("v_mul_f32 %s, %s, %s" % (v(S2), f32(1.0 / 2560), v(S1)))
        A("v_fma_f32 %s, -%s, %s, %s" % (v(M + 1), v(S2), v(S1), v(S1 + 1)))
        A("v_add_f32 %s, %s, %s" % (v(M), s(sC), v(S2)))
        A("s_lshl_b32 %s, %s, 3" % (s(sT[7]), s(sW)))
        A("s_add_u32 %s, %s, %d" % (s(sT[7]), s(sT[7]), MISC_LDS))
        Z = P + 12
        A("v_mov_b32 %s, %s" % (v(Z), s(sT[7])))
        A("ds_write_b64 %s, %s" % (v(Z), v(M, 2)))
        A("v_mov_b32 %s, %d" % (v(Z), MISC_LDS))
        A("s_lshl_b32 %s, %s, 2" % (s(sT[0]), s(sB)))
        A("s_add_u32 %s, %s, %s" % (s(sT[0]), s(sT[0]), s(sG)))
        A("s_lshl_b32 %s, %s, 8" % (s(sT[1]), s(sT[0])))
        A("s_add_u32 %s, %s, %d" % (s(sT[1]), s(sT[1]), ST2_OFF))
        srd(A, sE4, S_WS, s(sT[1]), 256)
        vm.need([("G", k) for k in range(6)])
        A("s_waitcnt lgkmcnt(0)")
        lg.reset_after_wait0()
        A("s_barrier")
        A("s_cmp_lg_u32 %s, 0" % s(sW))
        A("s_cbranch_scc1 %spub_done" % L)
        Rr = P + 16
        A("ds_read_b128 %s, %s" % (v(Rr, 4), v(Z)))
        A("ds_read_b128 %s, %s offset:16" % (v(Rr + 4, 4), v(Z)))
        A("s_lshl_b32 %s, %s, 2" % (s(sT[2]), s(sTY)))
        A("s_lshr_b32 %s, %s, 2" % (s(sT[3]), s(sTX)))
        A("s_add_u32 %s, %s, %s" % (s(sT[2]), s(sT[2]), s(sT[3])))
        A("v_mov_b32 %s, 0" % v(Z + 1))
        A("s_waitcnt lgkmcnt(0)")
        A("v_add_f32 %s, %s, %s" % (v(M), v(Rr), v(Rr + 2)))
        A("v_add_f32 %s, %s, %s" % (v(M + 1), v(Rr + 4), v(Rr + 6)))
        A("v_add_f32 %s, %s, %s" % (v(M), v(M), v(M + 1)))
        A("v_mul_f32 %s, 0.25, %s" % (v(M), v(M)) if False else "v_mul_f32 %s, %s, %s" % (v(M), f32(0.25), v(M)))
        A("v_add_f32 %s, %s, %s" % (v(M + 1), v(Rr + 1), v(Rr + 3)))
        A("v_add_f32 %s, %s, %s" % (v(Rr + 1), v(Rr + 5), v(Rr + 7)))
        A("v_add_f32 %s, %s, %s" % (v(M + 1), v(M + 1), v(Rr + 1)))
        for k in (0, 2, 4, 6):
            A("v_sub_f32 %s, %s, %s" % (v(Rr + k), v(Rr + k), v(M)))
        A("v_mul_f32 %s, %s, %s" % (v(Rr + 1), v(Rr), v(Rr)))
        for k in (2, 4, 6):
            A("v_fmac_f32 %s, %s, %s" % (v(Rr + 1), v(Rr + k), v(Rr + k)))
        A("v_fmac_f32 %s, %s, %s" % (v(M + 1), f32(2560.0), v(Rr + 1)))
        A("v_max_f32 %s, 0, %s" % (v(M + 1), v(M + 1)))
        A("v_or_b32 %s, 0x80000000, %s" % (v(M + 1), v(M + 1)))
        A("s_mov_b64 exec, 1")
        A("buffer_store_dwordx2 %s, %s, %s, %s offen sc0 sc1" % (v(M, 2), v(Z + 1), s(sE4, 4), s(sT[2])))
        A("s_mov_b64 exec, -1")
        A.label(L + "pub_done")
        ST.now(29)
        KP = P + 14
        A("v_mov_b32 %s, %s" % (v(KP), f32(-LOG2E)))
        A("v_mov_b32 %s, %s" % (v(KP + 1), f32(-LOG2E)))
        GA, BE = P + 24, P + 44
        for e, dst in enumerate((GA, BE)):
            base = vX + 20 + 10 * e
            for d in range(10):
                A("v_lshlrev_b32 %s, 16, %s" % (v(dst + 2 * d), v(base + d)))
                A("v_and_b32 %s, 0xffff0000, %s" % (v(dst + 2 * d + 1), v(base + d)))
        for k in range(0, 40, 2):
            A("v_pk_mul_f32 %s, %s, %s" % (v(GA + k, 2), v(GA + k, 2), v(KP, 2)))
        for k in range(0, 40, 2):
            A("v_pk_mul_f32 %s, %s, %s" % (v(vO + k, 2), v(vO + k, 2), v(GA + k % 20, 2)))
        A("s_mul_i32 %s, %s, %d" % (s(sT[0]), s(sT[0]), SLICE))
        A("s_add_u32 %s, %s, %d" % (s(sT[0]), s(sT[0]), A2_OFF))
        srd(A, sE5, S_WS, s(sT[0]), SLICE)
        A("s_add_u32 %s, %s, %s" % (s(sT[4]), s(sTY), s(sW)))
        A("s_lshl_b32 %s, %s, 6" % (s(sT[4]), s(sT[4])))
        A("s_add_u32 %s, %s, %s" % (s(sT[4]), s(sT[4]), s(sTX)))
        A("v_and_b32 %s, 15, %s" % (v(t0), v(vLane)))
        A("v_add_u32 %s, %s, %s" % (v(t0), s(sT[4]), v(t0)))
        A("v_lshrrev_b32 %s, 4, %s" % (v(t1), v(vLane)))
        A("v_bfe_u32 %s, %s, 2, 1" % (v(t2), v(vLane)))
        A("v_lshlrev_b32 %s, 1, %s" % (v(t2), v(t2)))
        A("v_xor_b32 %s, %s, %s" % (v(t2), v(t2), v(t1)))
        A("v_lshlrev_b32 %s, 4, %s" % (v(t2), v(t2)))
        A("v_lshl_add_u32 %s, %s, 6, %s" % (v(t2), v(t0), v(t2)))
        A("v_lshlrev_b32 %s, 3, %s" % (v(t3), v(t1)))
        A("v_lshl_add_u32 %s, %s, 5, %s" % (v(t3), v(t0), v(t3)))
        A("s_mov_b32 %s, %d" % (s(sT[3]), P1))
        A("s_mov_b32 %s, %d" % (s(sT[4]), P2))
        A("s_cmp_lg_u32 %s, 0" % s(sW))
        A("s_cbranch_scc1 %swait" % L)
        G = P + 16
        A("v_and_b32 %s, 31, %s" % (v(t4), v(vLane)))
        A("v_lshlrev_b32 %s, 3, %s" % (v(t4), v(t4)))
        PS = vY + 4

        def issue(i):
            A("buffer_load_dwordx2 %s, %s, %s, 0 offen sc0 sc1" % (v(PS + 2 * i, 2), v(t4), s(sE4, 4)))

        def check(i):
            A("v_cmp_gt_i32 vcc, 0, %s" % v(PS + 2 * i + 1))
            A("s_cmp_eq_u64 vcc, -1")

        def copy(i):
            A("v_mov_b32 %s, %s" % (v(G), v(PS + 2 * i)))
            A("v_mov_b32 %s, %s" % (v(G + 1), v(PS + 2 * i + 1)))
        poll_loop(A, L + "poll", opt.get("np", 3), 1, issue, check, copy, sT[5])
        ST.now(30)
        A("v_and_b32 %s, 0x7fffffff, %s" % (v(G + 1), v(G + 1)))
        A("v_mov_b32 %s, %s" % (v(G + 2), v(G)))

        def half_sum(r, t):
            row_sum(A, r)
            A("v_mov_b32 %s, %s" % (v(t), v(r)))
            A("v_permlane16_swap_b32 %s, %s" % (v(r), v(t)))
            A("v_add_f32 %s, %s, %s" % (v(r), v(r), v(t)))
        half_sum(G + 2, G + 3)
        A("v_mul_f32 %s, %s, %s" % (v(G + 2), f32(1.0 / 32), v(G + 2)))
        A("v_sub_f32 %s, %s, %s" % (v(G), v(G), v(G + 2)))
        A("v_mul_f32 %s, %s, %s" % (v(G), v(G), v(G)))
        A("v_fmac_f32 %s, %s, %s" % (v(G + 1), f32(10240.0), v(G)))
        half_sum(G + 1, G + 3)
        A("v_mov_b32 %s, %s" % (v(G + 3), f32(1e-5)))
        A("v_fmac_f32 %s, %s, %s" % (v(G + 3), f32(1.0 / 327680), v(G + 1)))
        A("v_rsq_f32 %s, %s" % (v(G + 3), v(G + 3)))
        A("ds_write_b64 %s, %s offset:32" % (v(Z), v(G + 2, 2)))
        A("s_waitcnt lgkmcnt(0)")
        A.label(L + "wait")
        A("s_barrier")
        A("ds_read_b64 %s, %s offset:32" % (v(G + 2, 2), v(Z)))
        A("s_waitcnt lgkmcnt(0)")
        A("v_sub_f32 %s, %s, %s" % (v(G + 2), s(sC), v(G + 2)))
        A("v_mul_f32 %s, %s, %s" % (v(G + 2), v(G + 2), v(G + 3)))
        for k in range(0, 20, 2):
            A("v_pk_fma_f32 %s, %s, %s, %s op_sel_hi:[1,0,1]" % (v(BE + k, 2), v(GA + k, 2), v(G + 2, 2), v(BE + k, 2)))
        for k in range(0, 40, 2):
            A("v_pk_fma_f32 %s, %s, %s, %s op_sel:[0,1,0] op_sel_hi:[1,1,1]" % (
                v(vO + k, 2), v(vO + k, 2), v(G + 2, 2), v(BE + k % 20, 2)))
        OUT = vX
        fl = opt.get("st_flags", "")
        for h in range(2):
            ob = OUT + 12 * h
            silu_batch(A, [vO + 20 * h + 2 * d for d in range(4)], vFr, KP, [ob + d for d in range(4)])
            A("buffer_store_dwordx4 %s, %s, %s, 0 offen offset:%d%s" % (v(ob, 4), v(t2), s(sE5, 4), h * 1024, fl))
            silu_batch(A, [vO + 20 * h + 8 + 2 * d for d in range(6)], vFr + 8, KP, [ob + 4 + d for d in range(6)])
            A("buffer_store_dwordx4 %s, %s, %s, %s offen offset:%d%s" % (v(ob + 4, 4), v(t2), s(sE5, 4), s(sT[3]), h * 1024, fl))
            A("buffer_store_dwordx2 %s, %s, %s, %s offen offset:%d%s" % (v(ob + 8, 2), v(t3), s(sE5, 4), s(sT[4]), h * 512, fl))
    ST.finish(4, 0, sW, vLane)
    A.label(L + "end")
    A("s_endpgm")
    nv = (VA.hi + 3) // 4 * 4
    return header(name) + A.finalize() + descriptor(name, nv + 240, nv)


HEAD = """; adm_resblock: GN+SiLU -> conv3x3 -> +emb -> GN+SiLU -> conv3x3 -> +x  (emitted by my generator script)
; @launch kernel=prep_kernel grid=(%d,1,1) block=(832,1,1) lds=%d
; @launch kernel=conv1_kernel grid=(256,1,1) block=(256,1,1) lds=%d
; @launch kernel=conv2_kernel grid=(256,1,1) block=(256,1,1) lds=%d
.amdgcn_target "amdgcn-amd-amdhsa--gfx950"
.text
"""


def build(opt):
    ptxt, pgrid = gen_prep(opt)
    txt = HEAD % (pgrid, PREP_LDS, CONV_LDS, CONV_LDS)
    txt += ptxt
    txt += gen_conv(1, opt)
    txt += gen_conv(2, opt)
    return txt


if __name__ == "__main__":
    opt = {}
    out = "standalone__adm_resblock__diffusion.s"
    for arg in sys.argv[1:]:
        k, val = arg.split("=")
        if k == "out":
            out = val
        elif k.endswith("flags"):
            opt[k] = " " + val.replace("+", " ")
        else:
            opt[k] = int(val)
    open(out, "w").write(build(opt))
    print("wrote", out)
```

```python
import sys, re
import gen8 as G
src = open(sys.argv[1]).read()
TL = G.DBG_OFF
def start_code(k):
    return "    s_memrealtime s[98:99]\n"
def end_code(k, wsel, last=False):
    c = "    s_waitcnt vmcnt(0) lgkmcnt(0)\n"
    c += "    s_memrealtime s[96:97]\n"
    c += "    s_load_dwordx2 s[24:25], s[0:1], 80\n    s_load_dwordx2 s[26:27], s[0:1], 88\n"
    c += "    s_waitcnt lgkmcnt(0)\n"
    c += "    s_and_b32 s94, s2, 127\n    s_cmp_lg_u32 s94, 0\n    s_cbranch_scc1 L_tl%d\n" % k
    c += "    v_cmp_eq_u32 vcc, 0, v0\n    s_and_b64 exec, exec, vcc\n    s_cbranch_execz L_tl%d\n" % k
    c += "    s_add_u32 s92, s26, %d\n    s_addc_u32 s93, s27, 0\n    s_mov_b32 s94, 256\n    s_mov_b32 s95, 0x00020000\n" % TL
    c += "    s_lshr_b32 s91, s2, 7\n    s_lshl_b32 s91, s91, 3\n    s_add_u32 s91, s91, %d\n" % (16 * k)
    c += "    v_mov_b32 v2, s98\n    v_mov_b32 v3, s96\n    v_mov_b32 v1, 0\n"
    c += "    buffer_store_dwordx2 v[2:3], v1, s[92:95], s91 offen sc0 sc1\n"
    if last:
        c += "    s_cmp_lg_u32 s2, 0\n    s_cbranch_scc1 L_tl%d\n" % k
        c += "    s_waitcnt vmcnt(0)\n"
        for j in range(3):
            c += "    buffer_load_dwordx4 v[%d:%d], v1, s[92:95], 0 offen offset:%d sc0 sc1\n" % (4 + 4 * j, 7 + 4 * j, 16 * j)
        c += "    s_mov_b32 s92, s24\n    s_mov_b32 s93, s25\n    s_waitcnt vmcnt(0)\n"
        for j in range(11, 0, -1):
            c += "    v_sub_u32 v%d, v%d, v4\n" % (4 + j, 4 + j)
        for j in range(3):
            c += "    buffer_store_dwordx4 v[%d:%d], v1, s[92:95], 0 offen offset:%d\n" % (4 + 4 * j, 7 + 4 * j, 16 * j)
    c += "L_tl%d:\n" % k
    return c
src = src.replace("prep_kernel:\n", "prep_kernel:\n" + start_code(0), 1)
i = src.index("L_prep_have:")
j = src.index("    s_endpgm", i)
src = src[:j] + end_code(0, 0) + src[j:]
for k, nm in ((1, "conv1"), (2, "conv2")):
    src = src.replace("%s_kernel:\n" % nm, "%s_kernel:\n" % nm + start_code(k), 1)
    lab = "L_c%d_end:\n" % k
    src = src.replace(lab, end_code(k, 0, last=(k == 2)) + lab, 1)
src = src.replace(".amdhsa_next_free_sgpr 96", ".amdhsa_next_free_sgpr 100")
open(sys.argv[2], "w").write(src)
```
